```python
import torch

def _softmax(x, axis=-1):
    return torch.softmax(x, dim=axis)
def _gelu(x):
    return torch.nn.functional.gelu(x, approximate="tanh")
def _silu(x):
    return torch.nn.functional.silu(x)
def _sigmoid(x):
    return torch.sigmoid(x)
def _layernorm(x, axis=-1, eps=1e-5):
    m = x.mean(dim=axis, keepdim=True)
    v = x.var(dim=axis, keepdim=True, unbiased=False)
    return (x - m) / torch.sqrt(v + eps)
def _scatter_add(tgt, idx, src, axis=0):
    return tgt.clone().index_add_(axis, idx, src)
def _segment_sum(src, seg, n):
    out = torch.zeros((n,) + src.shape[1:], dtype=src.dtype)
    return out.index_add_(0, seg, src)
def _pad(x, pw):
    flat = tuple(v for pair in reversed(pw) for v in pair)
    return torch.nn.functional.pad(x, flat)

kernel_name = 'parallel_sum__sliding_local_dilated__mixer_channel_mlp__prompt'

def setup_inputs():

    _w = (lambda a: (lambda t: t.to(torch.bfloat16) if t.is_floating_point() else t)(torch.as_tensor(a)))
    def _A_setup():
        B, S, D = 1, 2048, 640
        return {
            "x": _w((lambda *s: torch.randn(*s, dtype=torch.bfloat16) * 0.05)(B, S, D)),
            "wqkv": _w((lambda *s: torch.randn(*s, dtype=torch.bfloat16) * 0.05)(D, 3 * D)),
            "wo": _w((lambda *s: torch.randn(*s, dtype=torch.bfloat16) * 0.05)(D, D)),
        }
    _A_in = _A_setup()

    def _B_setup():
        B, S, D, F = 1, 2048, 640, 1536
        return {
            "x": _w((lambda *s: torch.randn(*s, dtype=torch.bfloat16) * 0.05)(B, S, D)),
            "w1": _w((lambda *s: torch.randn(*s, dtype=torch.bfloat16) * 3.2)(D, F) * (D ** -0.5)),
            "b1": _w((lambda *s: torch.randn(*s, dtype=torch.bfloat16) * 1.6)(F)),
            "w2": _w((lambda *s: torch.randn(*s, dtype=torch.bfloat16) * 0.2)(F, D) * (F ** -0.5)),
            "b2": _w((lambda *s: torch.randn(*s, dtype=torch.bfloat16) * 0.4)(D)),
        }
    _B_in = _B_setup()

    return {
        "A_x": _A_in["x"],
        "A_wqkv": _A_in["wqkv"],
        "A_wo": _A_in["wo"],
        "B_x": _B_in["x"],
        "B_w1": _B_in["w1"],
        "B_b1": _B_in["b1"],
        "B_w2": _B_in["w2"],
        "B_b2": _B_in["b2"],
    }

def reference(A_x, A_wqkv, A_wo, B_x, B_w1, B_b1, B_w2, B_b2):
    def _A_ref(x, wqkv, wo):
        B, S, D = x.shape
        H = 32; Dh = D // H
        W, dil = 8, 2
        qkv = (lambda x, *d: x.permute(*d))((x @ wqkv).reshape(B, S, 3, H, Dh), 2, 0, 3, 1, 4)
        q, k, v = qkv[0], qkv[1], qkv[2]
        scale = Dh ** -0.5
        pos = torch.arange(S)
        off = torch.arange(W) * dil
        idx = pos[:, None] - off[None, :]
        mask = idx >= 0
        idx_c = torch.where(mask, idx, 0).reshape(-1)
        kg = k[:, :, idx_c, :].reshape(B, H, S, W, Dh)
        vg = v[:, :, idx_c, :].reshape(B, H, S, W, Dh)
        logits = torch.einsum("bhsd,bhswd->bhsw", q, kg) * scale
        logits = torch.where(mask[None, None, :, :], logits, -1e9)
        attn = _softmax(logits, axis=-1)
        o = torch.einsum("bhsw,bhswd->bhsd", attn, vg)
        return (lambda x, *d: x.permute(*d))(o, 0, 2, 1, 3).reshape(B, S, D) @ wo

    def _B_ref(x, w1, b1, w2, b2):
        y = _layernorm(x, axis=-1)
        h = _gelu(torch.einsum("bsd,df->bsf", y, w1) + b1)
        return torch.einsum("bsf,fd->bsd", h, w2) + b2

    x = A_x
    xn = _layernorm(x, axis=-1)
    return x + _A_ref(xn, A_wqkv, A_wo) + _B_ref(xn, B_w1, B_b1, B_w2, B_b2)
```

```python
import sys, struct

NAME = "parallel_sum__sliding_local_dilated__mixer_channel_mlp__prompt"


def f32bits(x):
    return struct.unpack("<I", struct.pack("<f", x))[0]


class Asm:
    def __init__(self):
        self.lines = []
        self.vm = []
        self.lg = []
        self.nlab = 0

    def __call__(self, s):
        self.lines.append("    " + s)

    def label(self, l):
        self.lines.append(l + ":")

    def comment(self, s):
        self.lines.append("    ; " + s)

    def reset_counters(self):
        self.vm = []
        self.lg = []

    def vm_issue(self, tag):
        self.vm.append(tag)
        assert len(self.vm) <= 63, "vmcnt overflow"

    def lg_issue(self, tag):
        self.lg.append(tag)

    def wait(self, vm_tags=(), lg_tags=()):
        parts = []
        if vm_tags:
            idx = [i for i, t in enumerate(self.vm) if t in vm_tags]
            if idx:
                last = max(idx)
                n = len(self.vm) - 1 - last
                parts.append("vmcnt(%d)" % n)
                self.vm = self.vm[last + 1:]
        if lg_tags:
            idx = [i for i, t in enumerate(self.lg) if t in lg_tags]
            if idx:
                last = max(idx)
                n = len(self.lg) - 1 - last
                assert n <= 15
                parts.append("lgkmcnt(%d)" % n)
                self.lg = self.lg[last + 1:]
        if parts:
            self("s_waitcnt " + " ".join(parts))

    def wait_all(self, vm=True, lg=True):
        p = []
        if vm:
            p.append("vmcnt(0)")
            self.vm = []
        if lg:
            p.append("lgkmcnt(0)")
            self.lg = []
        self("s_waitcnt " + " ".join(p))


def vr(b, n=1):
    return "v%d" % b if n == 1 else "v[%d:%d]" % (b, b + n - 1)


def sr(b, n=1):
    return "s%d" % b if n == 1 else "s[%d:%d]" % (b, b + n - 1)


def mfma(a, d, x, y, c=None):
    a("v_mfma_f32_16x16x32_bf16 %s, %s, %s, %s" % (vr(d, 4), vr(x, 4), vr(y, 4), vr(d, 4) if c is None else c))


def srd(a, d, base, nbytes):
    a("s_mov_b32 %s, %s" % (sr(d), sr(base)))
    a("s_and_b32 %s, %s, 0xffff" % (sr(d + 1), sr(base + 1)))
    a("s_mov_b32 %s, 0x%x" % (sr(d + 2), nbytes))
    a("s_mov_b32 %s, 0x20000" % sr(d + 3))


S_TOK = 2048
D = 640
A2_PITCH = 2176 * 2
A2_BYTES = S_TOK * A2_PITCH
EPS = 1e-5
LOG2E = 1.4426950408889634
GC1 = 2.0 * 0.7978845608028654 * LOG2E
GC2 = GC1 * 0.044715
QK_SCALE = (20 ** -0.5) * LOG2E

SLOT = 32768
REGION = 16384
STAT = 131072
CS = STAT + 144 * 16
K1_LDS = CS + 224 * 4
QP = 304
PA = 4
NKS = 20
NCH = 10


def gen_k1(a):
    kn = "k1_kernel"
    a.lines.append(".globl %s" % kn)
    a.lines.append(".p2align 8")
    a.lines.append(".type %s,@function" % kn)
    a.label(kn)
    sX, sWQ, sW1, sB1, sWS = 8, 12, 16, 20, 24
    sRT, sCG, sW, sRG, sCH, sE = 40, 41, 42, 43, 44, 45
    sT0, sT1, sT2, sT3 = 46, 47, 48, 49
    a("s_cmp_ge_u32 s2, 256")
    a("s_cbranch_scc1 k1_end")
    a("s_load_dwordx4 s[28:31], s[0:1], 0")
    a("s_load_dwordx4 s[32:35], s[0:1], 32")
    a("s_load_dwordx2 s[36:37], s[0:1], 80")
    a("s_and_b32 s3, s2, 7")
    a("s_lshr_b32 s4, s2, 3")
    a("s_and_b32 s5, s3, 1")
    a("s_lshl_b32 s5, s5, 3")
    a("s_and_b32 s6, s4, 7")
    a("s_add_u32 %s, s5, s6" % sr(sRT))
    a("s_lshr_b32 s5, s3, 1")
    a("s_lshl_b32 s5, s5, 2")
    a("s_lshr_b32 s6, s4, 3")
    a("s_add_u32 %s, s5, s6" % sr(sCG))
    vL, vS, vG, vR, vC, vSig = 1, 2, 3, 30, 31, 32
    a("v_lshrrev_b32 v1, 6, v0")
    a("s_nop 0")
    a("v_readfirstlane_b32 %s, v1" % sr(sW))
    a("v_and_b32 v1, 63, v0")
    a("v_and_b32 v2, 15, v1")
    a("v_lshrrev_b32 v3, 4, v1")
    a("v_bfe_u32 v30, v1, 2, 2")
    a("v_and_b32 v31, 3, v1")
    a("v_and_b32 v32, 1, v3")
    a("v_lshl_or_b32 v32, v32, 2, v30")
    a("v_lshl_add_u32 v33, v3, 3, v30")
    a("v_lshlrev_b32 v33, 8, v33")
    a("v_and_b32 v34, 1, v31")
    a("v_lshl_add_u32 v33, v34, 3, v33")
    a("v_lshrrev_b32 v34, 1, v31")
    a("v_lshlrev_b32 v32, 1, v32")
    a("s_waitcnt lgkmcnt(0)")
    srd(a, sX, 28, S_TOK * D * 2)
    srd(a, sWQ, 30, 640 * 1920 * 2)
    srd(a, sW1, 32, 640 * 1536 * 2)
    srd(a, sB1, 34, 1536 * 2)
    srd(a, sWS, 36, A2_BYTES)
    a("s_cmp_ge_u32 %s, 8" % sr(sW))
    a("s_cbranch_scc1 k1_extra")

    def tr_addr(vd, sblk2, region):
        a("v_add_u32 v35, %s, v34" % sr(sblk2))
        a("v_xor_b32 v35, v35, v32")
        a("v_lshl_add_u32 %s, v35, 4, v33" % vr(vd))
        if region:
            a("v_add_u32 %s, 0x%x, %s" % (vr(vd), region * REGION, vr(vd)))

    def tr_reads(buf, addr_lo, addr_hi, t, tag):
        c = t // 2
        slot = c % 4
        base = addr_lo if slot < 2 else addr_hi
        off = (slot & 1) * SLOT + (t & 1) * 8192
        a("ds_read_b64_tr_b16 %s, %s offset:%d" % (vr(buf, 2), vr(base), off))
        a.lg_issue(tag)
        a("ds_read_b64_tr_b16 %s, %s offset:%d" % (vr(buf + 2, 2), vr(base), off + 1024))
        a.lg_issue(tag)

    def stats_compute(vsum, vsq4, out4, tmp):
        t0, t1, t2 = tmp, tmp + 1, tmp + 2
        a("v_and_b32 %s, 3, v2" % vr(t0))
        a("v_mov_b32 %s, %s" % (vr(t1), vr(vsq4)))
        for i in (1, 2, 3):
            a("v_cmp_eq_u32 vcc, %d, %s" % (i, vr(t0)))
            a("s_nop 1")
            a("v_cndmask_b32 %s, %s, %s, vcc" % (vr(t1), vr(t1), vr(vsq4 + i)))
        a("v_lshrrev_b32 %s, 2, v2" % vr(t0))
        a("v_lshl_add_u32 %s, %s, 4, v2" % (vr(t0), vr(t0)))
        a("v_lshlrev_b32 %s, 2, %s" % (vr(t0), vr(t0)))
        a("ds_bpermute_b32 %s, %s, %s" % (vr(t2), vr(t0), vr(t1)))
        a("s_waitcnt lgkmcnt(0)")
        a.lg = []
        a("v_mul_f32 %s, 0x%x, %s" % (vr(t0), f32bits(1.0 / 640), vr(vsum)))
        a("v_mul_f32 %s, 0x%x, %s" % (vr(t2), f32bits(1.0 / 640), vr(t2)))
        a("v_fma_f32 %s, -%s, %s, %s" % (vr(t2), vr(t0), vr(t0), vr(t2)))
        a("v_max_f32 %s, 0, %s" % (vr(t2), vr(t2)))
        a("v_add_f32 %s, 0x%x, %s" % (vr(t1), f32bits(EPS), vr(t2)))
        a("v_rsq_f32 %s, %s" % (vr(out4), vr(t1)))
        a("s_nop 0")
        a("v_mul_f32 %s, %s, %s" % (vr(t1), vr(out4), vr(out4)))
        a("v_mul_f32 %s, %s, %s" % (vr(t1), vr(t1), vr(t2)))
        a("v_add_f32 %s, 0x%x, %s" % (vr(t1), f32bits(EPS), vr(t1)))
        a("v_rsq_f32 %s, %s" % (vr(t1), vr(t1)))
        a("v_mul_f32 %s, %s, %s" % (vr(out4 + 1), vr(out4), vr(t0)))
        a("v_mul_f32 %s, %s, %s" % (vr(out4 + 2), vr(out4), vr(t1)))
        a("v_mul_f32 %s, %s, %s" % (vr(out4 + 3), vr(out4 + 2), vr(t0)))

    def qkv_pos(vd, sblk4, vrow, tmp):
        a("v_add_u32 %s, %s, v3" % (vr(tmp), sr(sblk4)))
        a("v_mul_u32_u24 %s, 52, %s" % (vr(tmp + 1), vr(tmp)))
        a("v_lshrrev_b32 %s, 8, %s" % (vr(tmp + 1), vr(tmp + 1)))
        a("v_add_u32 %s, %s, %s" % (vr(tmp), vr(tmp), vr(tmp + 1)))
        a("v_mul_u32_u24 %s, %d, %s" % (vr(vd), QP, vr(vrow)))
        a("v_lshl_add_u32 %s, %s, 3, %s" % (vr(vd), vr(tmp), vr(vd)))

    a.reset_counters()
    vA0, vA1 = 4, 5
    vTL, vTH = 6, 13
    vB1 = 20
    vONE = 26
    AB = 36
    BB = AB + PA * 8
    NB = 4
    ACC = BB + NB * 4
    ST = ACC + 56
    a("s_and_b32 %s, %s, 3" % (sr(sRG), sr(sW)))
    a("s_lshr_b32 %s, %s, 2" % (sr(sCH), sr(sW)))
    a("s_lshl_b32 %s, %s, 7" % (sr(sT0), sr(sRT)))
    a("s_lshl_b32 %s, %s, 5" % (sr(sT1), sr(sRG)))
    a("s_add_u32 %s, %s, %s" % (sr(sT0), sr(sT0), sr(sT1)))
    a("s_lshl_b32 %s, %s, 4" % (sr(sT1), sr(sCH)))
    a("s_add_u32 %s, %s, %s" % (sr(sT2), sr(sT0), sr(sT1)))
    a("s_sub_u32 %s, %s, %s" % (sr(sT3), sr(sT0), sr(sT1)))
    a("s_add_u32 %s, %s, 16" % (sr(sT3), sr(sT3)))
    a("v_add_u32 v4, %s, v2" % sr(sT2))
    a("v_add_u32 v5, %s, v2" % sr(sT3))
    a("v_mul_u32_u24 v4, 1280, v4")
    a("v_mul_u32_u24 v5, 1280, v5")
    a("v_lshl_add_u32 v4, v3, 4, v4")
    a("v_lshl_add_u32 v5, v3, 4, v5")
    for t in range(PA):
        a("buffer_load_dwordx4 %s, v4, %s, 0 offen offset:%d" % (vr(AB + t * 8, 4), sr(sX, 4), 64 * t))
        a.vm_issue(("A", t))
        a("buffer_load_dwordx4 %s, v5, %s, 0 offen offset:%d" % (vr(AB + t * 8 + 4, 4), sr(sX, 4), 64 * t))
        a.vm_issue(("A", t))
    a("s_mul_i32 %s, %s, 192" % (sr(sT0), sr(sCG)))
    a("s_mul_i32 %s, %s, 96" % (sr(sT1), sr(sCH)))
    a("s_add_u32 %s, %s, %s" % (sr(sT0), sr(sT0), sr(sT1)))
    a("v_lshlrev_b32 v35, 3, v3")
    a("v_add_u32 v35, %s, v35" % sr(sT0))
    for j in range(3):
        a("buffer_load_dwordx2 %s, v35, %s, 0 offen offset:%d" % (vr(vB1 + 2 * j, 2), sr(sB1, 4), 32 * j))
        a.vm_issue("b1")
    for j in range(7):
        if j < 4:
            a("s_lshl_b32 %s, %s, 3" % (sr(sT0), sr(sCH)))
            a("s_add_u32 %s, %s, %d" % (sr(sT0), sr(sT0), 2 * j))
            tr_addr(vTL + j, sT0, 0)
        else:
            a("s_mul_i32 %s, %s, 6" % (sr(sT0), sr(sCH)))
            a("s_add_u32 %s, %s, %d" % (sr(sT0), sr(sT0), 2 * (j - 4)))
            tr_addr(vTL + j, sT0, 1)
        a("v_add_u32 %s, 0x10000, %s" % (vr(vTH + j), vr(vTL + j)))
    for i in range(4):
        a("v_mov_b32 %s, 0x3f803f80" % vr(vONE + i))
    for i in range(64):
        a("v_mov_b32 %s, 0" % vr(ACC + i))
    a("s_barrier")
    PF = 3
    NFR = NKS * 7
    for n in range(PF):
        tr_reads(BB + (n % NB) * 4, vTL + n % 7, vTH + n % 7, n // 7, ("B", n))
    for t in range(NKS):
        a.comment("k-step %d" % t)
        ab = AB + (t % PA) * 8
        a.wait(vm_tags=[("A", t)])
        mfma(a, ST + 4, ab, ab)
        mfma(a, ST, vONE, ab)
        for j in range(7):
            n = 7 * t + j
            m = n + PF
            if m < NFR:
                tr_reads(BB + (m % NB) * 4, vTL + m % 7, vTH + m % 7, m // 7, ("B", m))
            a.wait(lg_tags=[("B", n)])
            bb = BB + (n % NB) * 4
            mfma(a, ACC + j * 4, bb, ab)
            mfma(a, ACC + 28 + j * 4, bb, ab + 4)
        if t + PA < NKS:
            a("buffer_load_dwordx4 %s, v4, %s, 0 offen offset:%d" % (vr(ab, 4), sr(sX, 4), 64 * (t + PA)))
            a.vm_issue(("A", t + PA))
            a("buffer_load_dwordx4 %s, v5, %s, 0 offen offset:%d" % (vr(ab + 4, 4), sr(sX, 4), 64 * (t + PA)))
            a.vm_issue(("A", t + PA))
        if t % 2 == 0 and t < 18:
            a("s_barrier")
    a("s_nop 7")
    a("s_nop 3")
    TMP = 36
    vST0 = 40
    vST1 = 44
    stats_compute(ST, ST + 4, vST0, TMP)
    a("s_lshl_b32 %s, %s, 5" % (sr(sT0), sr(sRG)))
    a("s_lshl_b32 %s, %s, 4" % (sr(sT1), sr(sCH)))
    a("s_add_u32 %s, %s, %s" % (sr(sT2), sr(sT0), sr(sT1)))
    a("s_add_u32 %s, %s, 16" % (sr(sT2), sr(sT2)))
    a("s_sub_u32 %s, %s, %s" % (sr(sT3), sr(sT0), sr(sT1)))
    a("s_add_u32 %s, %s, 32" % (sr(sT3), sr(sT3)))
    vRL0, vRL1 = 48, 49
    a("v_add_u32 v48, %s, v2" % sr(sT2))
    a("v_add_u32 v49, %s, v2" % sr(sT3))
    a("v_lshlrev_b32 v50, 4, v48")
    a("v_lshlrev_b32 v51, 4, v49")
    a("ds_write_b128 v50, %s offset:0" % vr(vST0, 4) if False else "v_add_u32 v50, 0x%x, v50" % STAT)
    a("v_add_u32 v51, 0x%x, v51" % STAT)
    a("ds_write_b128 v50, %s" % vr(vST0, 4))
    a("s_waitcnt lgkmcnt(0)")
    a("s_barrier")
    a("ds_read_b128 %s, v51" % vr(vST1, 4))
    CSR = 52
    a("s_lshl_b32 %s, %s, 8" % (sr(sT0), sr(sCH)))
    a("s_add_u32 %s, %s, 0x%x" % (sr(sT0), sr(sT0), CS))
    a("v_lshl_add_u32 v36, v3, 4, %s" % sr(sT0))
    for j in range(4):
        a("ds_read_b128 %s, v36 offset:%d" % (vr(CSR + 4 * j, 4), 64 * j))
    a("s_mul_i32 %s, %s, 192" % (sr(sT0), sr(sCH)))
    a("s_add_u32 %s, %s, 0x%x" % (sr(sT0), sr(sT0), CS + 512))
    a("v_lshl_add_u32 v37, v3, 4, %s" % sr(sT0))
    for j in range(3):
        a("ds_read_b128 %s, v37 offset:%d" % (vr(CSR + 16 + 4 * j, 4), 64 * j))
    a("s_waitcnt lgkmcnt(0)")
    for j in range(4):
        a("s_lshl_b32 %s, %s, 4" % (sr(sT0), sr(sCH)))
        a("s_add_u32 %s, %s, %d" % (sr(sT0), sr(sT0), 4 * j))
        for b in range(2):
            st = vST0 if b == 0 else vST1
            acc = ACC + 28 * b + 4 * j
            for i in range(4):
                a("v_mul_f32 v80, %s, %s" % (vr(st + 1), vr(CSR + 4 * j + i)))
                a("v_fma_f32 %s, %s, %s, -v80" % (vr(acc + i), vr(acc + i), vr(st)))
            a("v_cvt_pk_bf16_f32 %s, %s, %s" % (vr(acc), vr(acc), vr(acc + 1)))
            a("v_cvt_pk_bf16_f32 %s, %s, %s" % (vr(acc + 1), vr(acc + 2), vr(acc + 3)))
            qkv_pos(38, sT0, vRL0 if b == 0 else vRL1, 36)
            a("ds_write_b64 v38, %s" % vr(acc, 2))
    a.wait(vm_tags=["b1"])
    a("s_mul_i32 %s, %s, 192" % (sr(sT0), sr(sCG)))
    a("s_mul_i32 %s, %s, 96" % (sr(sT1), sr(sCH)))
    a("s_add_u32 %s, %s, %s" % (sr(sT0), sr(sT0), sr(sT1)))
    a("s_add_u32 %s, %s, 1280" % (sr(sT0), sr(sT0)))
    a("s_lshl_b32 %s, %s, 7" % (sr(sT1), sr(sRT)))
    a("s_sub_u32 %s, %s, 16" % (sr(sT1), sr(sT1)))
    a("s_mov_b32 %s, %d" % (sr(sT2), A2_PITCH))
    for b in range(2):
        a("v_add_u32 v36, %s, %s" % (sr(sT1), vr(vRL0 + b)))
        a("v_mul_lo_u32 v36, v36, %s" % sr(sT2))
        a("v_lshl_add_u32 v36, v3, 3, v36")
        a("v_add_u32 %s, %s, v36" % (vr(38 + b), sr(sT0)))
    a("s_mov_b32 %s, 0x%x" % (sr(sT2), f32bits(GC1)))
    a("s_mov_b32 %s, 0x%x" % (sr(sT3), f32bits(GC2)))
    for j in range(3):
        a("v_lshlrev_b32 v80, 16, %s" % vr(vB1 + 2 * j))
        a("v_and_b32 v81, 0xffff0000, %s" % vr(vB1 + 2 * j))
        a("v_lshlrev_b32 v82, 16, %s" % vr(vB1 + 2 * j + 1))
        a("v_and_b32 v83, 0xffff0000, %s" % vr(vB1 + 2 * j + 1))
        for b in range(2):
            st = vST0 if b == 0 else vST1
            acc = ACC + 28 * b + 4 * (4 + j)
            for i in range(4):
                x = vr(acc + i)
                a("v_fma_f32 v36, -%s, %s, %s" % (vr(st + 3), vr(CSR + 16 + 4 * j + i), vr(80 + i)))
                a("v_fma_f32 %s, %s, %s, v36" % (x, x, vr(st + 2)))
                a("v_mul_f32 v36, %s, %s" % (x, x))
                a("v_mov_b32 v37, %s" % sr(sT2))
                a("v_fma_f32 v36, v36, %s, v37" % sr(sT3))
                a("v_mul_f32 v36, -%s, v36" % x if False else "v_mul_f32_e64 v36, -%s, v36" % x)
                a("v_exp_f32 v36, v36")
                a("s_nop 0")
                a("v_add_f32 v36, 1.0, v36")
                a("v_rcp_f32 v36, v36")
                a("s_nop 0")
                a("v_mul_f32 %s, %s, v36" % (x, x))
            a("v_cvt_pk_bf16_f32 %s, %s, %s" % (vr(acc), vr(acc), vr(acc + 1)))
            a("v_cvt_pk_bf16_f32 %s, %s, %s" % (vr(acc + 1), vr(acc + 2), vr(acc + 3)))
            a("buffer_store_dwordx2 %s, %s, %s, 0 offen offset:%d" % (vr(acc, 2), vr(38 + b), sr(sWS, 4), 32 * j))
    a("s_waitcnt lgkmcnt(0)")
    a("s_barrier")
    a("v_and_b32 v4, 1, v0")
    a("v_bfe_u32 v5, v0, 1, 7")
    a("v_lshrrev_b32 v6, 8, v0")
    a("v_lshlrev_b32 v7, 3, v4")
    a("v_sub_u32 v7, v5, v7")
    a("v_add_u32 v7, 10, v7")
    a("v_mul_u32_u24 v7, %d, v7" % QP)
    a("v_mul_u32_u24 v8, 48, v6")
    a("v_add_u32 v7, v7, v8")
    a("v_add_u32 v9, 16, v5")
    a("v_mul_u32_u24 v9, %d, v9" % QP)
    a("v_add_u32 v9, v9, v8")
    Q, KK, VV = 20, 32, 80
    a("ds_read_b128 %s, v9 offset:192" % vr(Q, 4))
    a("ds_read_b128 %s, v9 offset:208" % vr(Q + 4, 4))
    a("ds_read_b64 %s, v9 offset:224" % vr(Q + 8, 2))
    for ww in range(4):
        off = (6 - 2 * ww) * QP
        a("ds_read_b128 %s, v7 offset:%d" % (vr(KK + 12 * ww, 4), off))
        a("ds_read_b128 %s, v7 offset:%d" % (vr(KK + 12 * ww + 4, 4), off + 16))
        a("ds_read_b64 %s, v7 offset:%d" % (vr(KK + 12 * ww + 8, 2), off + 32))
    a("s_waitcnt lgkmcnt(0)")
    for ww in range(4):
        off = (6 - 2 * ww) * QP + 96
        a("ds_read_b128 %s, v7 offset:%d" % (vr(VV + 12 * ww, 4), off))
        a("ds_read_b128 %s, v7 offset:%d" % (vr(VV + 12 * ww + 4, 4), off + 16))
        a("ds_read_b64 %s, v7 offset:%d" % (vr(VV + 12 * ww + 8, 2), off + 32))
    LG = 10
    for ww in range(4):
        a("v_mov_b32 %s, 0" % vr(LG + ww))
    for d in range(10):
        for ww in range(4):
            a("v_dot2_f32_bf16 %s, %s, %s, %s" % (vr(LG + ww), vr(Q + d), vr(KK + 12 * ww + d), vr(LG + ww)))
    a("s_lshl_b32 %s, %s, 7" % (sr(sT0), sr(sRT)))
    a("v_add_u32 v14, %s, v5" % sr(sT0))
    a("v_lshlrev_b32 v15, 3, v4")
    a("v_sub_u32 v14, v14, v15")
    a("v_mov_b32 v15, 0x%x" % f32bits(-1e9))
    a("v_mov_b32 v16, 0x%x" % f32bits(QK_SCALE))
    for ww in range(4):
        a("v_mul_f32 %s, %s, v16" % (vr(LG + ww), vr(LG + ww)))
        a("v_cmp_le_i32 vcc, %d, v14" % (2 * ww))
        a("s_nop 1")
        a("v_cndmask_b32 %s, v15, %s, vcc" % (vr(LG + ww), vr(LG + ww)))
    a("v_max_f32 v16, v10, v11")
    a("v_max3_f32 v16, v16, v12, v13")
    a("s_nop 1")
    a("v_max_f32_dpp v17, v16, v16 quad_perm:[1,0,3,2] row_mask:0xf bank_mask:0xf")
    for ww in range(4):
        a("v_sub_f32 %s, %s, v17" % (vr(LG + ww), vr(LG + ww)))
        a("v_exp_f32 %s, %s" % (vr(LG + ww), vr(LG + ww)))
    a("s_nop 0")
    a("v_add_f32 v16, v10, v11")
    a("v_add_f32 v18, v12, v13")
    a("v_add_f32 v16, v16, v18")
    a("s_nop 1")
    a("v_add_f32_dpp v17, v16, v16 quad_perm:[1,0,3,2] row_mask:0xf bank_mask:0xf")
    a("v_rcp_f32 v17, v17")
    a("s_nop 0")
    PL, PH = 20, 24
    for ww in range(4):
        a("v_mul_f32 %s, %s, v17" % (vr(LG + ww), vr(LG + ww)))
        a("v_cvt_pk_bf16_f32 %s, %s, 0" % (vr(PL + ww), vr(LG + ww)))
        a("v_lshlrev_b32 %s, 16, %s" % (vr(PH + ww), vr(PL + ww)))
    O = 32
    a("s_waitcnt lgkmcnt(0)")
    for d in range(10):
        a("v_dot2_f32_bf16 %s, %s, %s, 0" % (vr(O + 2 * d), vr(VV + d), vr(PL)))
        a("v_dot2_f32_bf16 %s, %s, %s, 0" % (vr(O + 2 * d + 1), vr(VV + d), vr(PH)))
    for ww in range(1, 4):
        for d in range(10):
            a("v_dot2_f32_bf16 %s, %s, %s, %s" % (vr(O + 2 * d), vr(VV + 12 * ww + d), vr(PL + ww), vr(O + 2 * d)))
            a("v_dot2_f32_bf16 %s, %s, %s, %s" % (vr(O + 2 * d + 1), vr(VV + 12 * ww + d), vr(PH + ww), vr(O + 2 * d + 1)))
    a("v_cmp_eq_u32 vcc, 1, v4")
    a("s_nop 1")
    R = 56
    for d in range(10):
        a("v_cndmask_b32 %s, %s, %s, vcc" % (vr(R + d), vr(O + d), vr(O + 10 + d)))
        a("v_cndmask_b32 %s, %s, %s, vcc" % (vr(R + 10 + d), vr(O + 10 + d), vr(O + d)))
    a("s_nop 1")
    for d in range(10):
        a("v_add_f32_dpp %s, %s, %s quad_perm:[1,0,3,2] row_mask:0xf bank_mask:0xf" % (vr(R + d), vr(R + 10 + d), vr(R + d)))
    for d in range(5):
        a("v_cvt_pk_bf16_f32 %s, %s, %s" % (vr(R + 20 + d), vr(R + 2 * d), vr(R + 2 * d + 1)))
    a("v_add_u32 v14, %s, v5" % sr(sT0))
    a("s_mov_b32 %s, %d" % (sr(sT2), A2_PITCH))
    a("v_mul_lo_u32 v14, v14, %s" % sr(sT2))
    a("s_mul_i32 %s, %s, 80" % (sr(sT1), sr(sCG)))
    a("v_mul_u32_u24 v15, 40, v6")
    a("v_mul_u32_u24 v16, 20, v4")
    a("v_add3_u32 v14, v14, v15, v16")
    a("v_add_u32 v14, %s, v14" % sr(sT1))
    a("buffer_store_dwordx4 %s, v14, %s, 0 offen" % (vr(R + 20, 4), sr(sWS, 4)))
    a("buffer_store_dword %s, v14, %s, 0 offen offset:16" % (vr(R + 24), sr(sWS, 4)))
    a("s_endpgm")

    a.label("k1_extra")
    a.reset_counters()
    vDQ, vDM = 20, 24
    EONE = 28
    EAB = 36
    EBB = EAB + PA * 4
    EACC = EBB + NB * 4
    EST = EACC + 16
    EONES = 92
    a("s_sub_u32 %s, %s, 8" % (sr(sE), sr(sW)))
    a("s_mul_i32 %s, %s, 80" % (sr(sT0), sr(sCG)))
    a("s_mul_i32 %s, %s, 192" % (sr(sT1), sr(sCG)))
    for var in range(2):
        a("v_lshlrev_b32 v35, 1, v3")
        if var:
            a("v_or_b32 v35, 8, v35")
        a("v_xor_b32 v35, v35, v2")
        a("v_min_u32 v36, 14, v35")
        a("v_mul_u32_u24 v37, 52, v36")
        a("v_lshrrev_b32 v37, 8, v37")
        a("v_mul_u32_u24 v38, 5, v37")
        a("v_sub_u32 v38, v36, v38")
        a("v_add_u32 v39, 1, v37")
        a("v_cmp_eq_u32 vcc, 2, v37")
        a("s_nop 1")
        a("v_cndmask_b32 v39, v39, 0, vcc")
        a("v_mul_u32_u24 v39, 1280, v39")
        a("v_lshl_add_u32 v39, v38, 4, v39")
        a("v_add_u32 v39, %s, v39" % sr(sT0))
        a("v_min_u32 v40, 11, v35")
        a("v_lshlrev_b32 v40, 4, v40")
        a("v_add_u32 v40, %s, v40" % sr(sT1))
        for jl in range(2):
            jj = 2 * var + jl
            a("s_lshl_b32 %s, %s, 4" % (sr(sT2), sr(sE)))
            a("s_add_u32 %s, %s, %d" % (sr(sT2), sr(sT2), 4 * jj))
            a("v_add_u32 v41, %s, v3" % sr(sT2))
            a("v_mul_u32_u24 v42, 3840, v41")
            a("v_add_u32 %s, v42, v39" % vr(vDQ + jj))
            a("v_mul_u32_u24 v42, 3072, v41")
            a("v_add_u32 %s, v42, v40" % vr(vDM + jj))
    sEB = 50
    a("s_lshl_b32 %s, %s, 12" % (sr(sEB), sr(sE)))

    def dma_chunk(c):
        slot = c % 4
        a("s_mov_b32 %s, 0x%x" % (sr(sT0), c * 64 * 3840))
        a("s_mov_b32 %s, 0x%x" % (sr(sT1), c * 64 * 3072))
        for jj in range(4):
            a("s_add_u32 m0, %s, 0x%x" % (sr(sEB), slot * SLOT + jj * 1024))
            a("s_nop 0")
            a("buffer_load_dwordx4 %s, %s, %s offen lds" % (vr(vDQ + jj), sr(sWQ, 4), sr(sT0)))
            a.vm_issue(("D", c))
        for jj in range(4):
            a("s_add_u32 m0, %s, 0x%x" % (sr(sEB), slot * SLOT + REGION + jj * 1024))
            a("s_nop 0")
            a("buffer_load_dwordx4 %s, %s, %s offen lds" % (vr(vDM + jj), sr(sW1, 4), sr(sT1)))
            a.vm_issue(("D", c))

    dma_chunk(0)
    a("s_lshl_b32 %s, %s, 7" % (sr(sT2), sr(sRT)))
    a("s_sub_u32 %s, %s, 16" % (sr(sT2), sr(sT2)))
    a("v_add_u32 v4, %s, v2" % sr(sT2))
    a("s_movk_i32 %s, 1280" % sr(sT3))
    a("v_mul_lo_u32 v4, v4, %s" % sr(sT3))
    a("v_lshl_add_u32 v4, v3, 4, v4")
    for t in range(PA):
        a("buffer_load_dwordx4 %s, v4, %s, 0 offen offset:%d" % (vr(EAB + t * 4, 4), sr(sX, 4), 64 * t))
        a.vm_issue(("A", t))
    dma_chunk(1)
    dma_chunk(2)
    for i in range(4):
        a("s_lshl_b32 %s, %s, 2" % (sr(sT0), sr(sE)))
        a("s_add_u32 %s, %s, %d" % (sr(sT0), sr(sT0), i))
        a("s_cmp_lt_u32 %s, 14" % sr(sT0))
        a("s_cselect_b32 %s, %s, 0" % (sr(sT0), sr(sT0)))
        a("s_and_b32 %s, %s, 7" % (sr(sT1), sr(sT0)))
        a("s_lshl_b32 %s, %s, 1" % (sr(sT1), sr(sT1)))
        a("s_lshr_b32 %s, %s, 3" % (sr(sT0), sr(sT0)))
        a("s_lshl_b32 %s, %s, 14" % (sr(sT0), sr(sT0)))
        tr_addr(vTL + i, sT1, 0)
        a("v_add_u32 %s, %s, %s" % (vr(vTL + i), sr(sT0), vr(vTL + i)))
        a("v_add_u32 %s, 0x10000, %s" % (vr(vTH + i), vr(vTL + i)))
    for i in range(4):
        a("v_mov_b32 %s, 0x3f803f80" % vr(EONES + i))
    for i in range(24):
        a("v_mov_b32 %s, 0" % vr(EACC + i))
    a("v_cmp_eq_u32 s[52:53], 0, v2")
    a.wait(vm_tags=[("D", 0)])
    a("s_barrier")
    NFR = NKS * 4
    for n in range(PF):
        tr_reads(EBB + (n % NB) * 4, vTL + n % 4, vTH + n % 4, n // 4, ("B", n))
    for t in range(NKS):
        a.comment("extra k-step %d" % t)
        ab = EAB + (t % PA) * 4
        a.wait(vm_tags=[("A", t)])
        for i in range(4):
            a("v_cndmask_b32 %s, %s, %s, s[52:53]" % (vr(ab + i), vr(ab + i), vr(EONES)))
        a("s_nop 1")
        mfma(a, EST + 4, ab, ab)
        mfma(a, EST, EONES, ab)
        for j in range(4):
            n = 4 * t + j
            m = n + PF
            if m < NFR:
                tr_reads(EBB + (m % NB) * 4, vTL + m % 4, vTH + m % 4, m // 4, ("B", m))
            a.wait(lg_tags=[("B", n)])
            mfma(a, EACC + j * 4, EBB + (n % NB) * 4, ab)
        if t + PA < NKS:
            a("buffer_load_dwordx4 %s, v4, %s, 0 offen offset:%d" % (vr(ab, 4), sr(sX, 4), 64 * (t + PA)))
            a.vm_issue(("A", t + PA))
        if t % 2 == 0 and t < 18:
            c = t // 2
            a.wait(vm_tags=[("D", c + 1)])
            a("s_barrier")
            if c + 3 < NCH:
                dma_chunk(c + 3)
    a("s_nop 7")
    a("s_nop 3")
    vES = 40
    stats_compute(EST, EST + 4, vES, 36)
    a("v_lshlrev_b32 v36, 4, v2")
    a("v_add_u32 v36, 0x%x, v36" % STAT)
    a("ds_write_b128 v36, %s" % vr(vES, 4))
    a("s_lshl_b32 %s, %s, 8" % (sr(sT0), sr(sE)))
    a("s_add_u32 %s, %s, 0x%x" % (sr(sT0), sr(sT0), CS))
    a("v_lshl_add_u32 v36, v3, 4, %s" % sr(sT0))
    a("s_mov_b64 s[54:55], exec")
    a("s_mov_b64 exec, s[52:53]")
    a("ds_write_b128 v36, %s offset:0" % vr(EACC, 4))
    a("ds_write_b128 v36, %s offset:64" % vr(EACC + 4, 4))
    a("s_cmp_eq_u32 %s, 3" % sr(sE))
    a("s_cbranch_scc1 k1_x_skipcs")
    a("ds_write_b128 v36, %s offset:128" % vr(EACC + 8, 4))
    a("ds_write_b128 v36, %s offset:192" % vr(EACC + 12, 4))
    a.label("k1_x_skipcs")
    a("s_mov_b64 exec, s[54:55]")
    a("s_waitcnt lgkmcnt(0)")
    a("s_barrier")
    a("s_cmp_ge_u32 %s, 2" % sr(sE))
    a("s_cbranch_scc1 k1_x_done")
    for i in range(4):
        a("ds_read_b128 %s, v36 offset:%d" % (vr(48 + 4 * i, 4), 64 * i))
    a("s_waitcnt lgkmcnt(0)")
    for i in range(4):
        if i == 1:
            a("s_cmp_eq_u32 %s, 1" % sr(sE))
            a("s_cbranch_scc1 k1_x_done")
        a("s_lshl_b32 %s, %s, 4" % (sr(sT0), sr(sE)))
        a("s_add_u32 %s, %s, %d" % (sr(sT0), sr(sT0), 4 * i))
        acc = EACC + 4 * i
        for k in range(4):
            a("v_mul_f32 v64, %s, %s" % (vr(vES + 1), vr(48 + 4 * i + k)))
            a("v_fma_f32 %s, %s, %s, -v64" % (vr(acc + k), vr(acc + k), vr(vES)))
        a("v_cvt_pk_bf16_f32 %s, %s, %s" % (vr(acc), vr(acc), vr(acc + 1)))
        a("v_cvt_pk_bf16_f32 %s, %s, %s" % (vr(acc + 1), vr(acc + 2), vr(acc + 3)))
        qkv_pos(66, sT0, 2, 64)
        a("ds_write_b64 v66, %s" % vr(acc, 2))
    a.label("k1_x_done")
    a("s_waitcnt lgkmcnt(0)")
    a("s_barrier")
    a.label("k1_end")
    a("s_endpgm")


K2_R = 6
K2_SLOT = 5120
K2_RING = K2_R * K2_SLOT
K2_LDS = 4 * K2_RING
PA2 = 4
NK2 = 17


def gen_k2(a):
    kn = "k2_kernel"
    a.lines.append(".globl %s" % kn)
    a.lines.append(".p2align 8")
    a.lines.append(".type %s,@function" % kn)
    a.label(kn)
    a.reset_counters()
    sX, sWO, sW2, sB2, sWS, sOUT, sB = 8, 12, 16, 20, 24, 28, 32
    sRT, sCG, sW, sT0, sT1, sT2, sKB, sAO, sLB = 50, 51, 52, 53, 54, 55, 56, 57, 58
    a("s_cmp_ge_u32 s2, 256")
    a("s_cbranch_scc1 k2_end")
    a("s_load_dwordx2 s[36:37], s[0:1], 0")
    a("s_load_dwordx2 s[38:39], s[0:1], 16")
    a("s_load_dwordx4 s[40:43], s[0:1], 48")
    a("s_load_dwordx2 s[44:45], s[0:1], 64")
    a("s_load_dwordx2 s[46:47], s[0:1], 80")
    a("s_and_b32 s3, s2, 7")
    a("s_lshr_b32 s4, s2, 3")
    a("s_lshl_b32 s5, s3, 2")
    a("s_and_b32 s6, s4, 3")
    a("s_add_u32 %s, s5, s6" % sr(sRT))
    a("s_lshr_b32 %s, s4, 2" % sr(sCG))
    a("v_lshrrev_b32 v1, 6, v0")
    a("s_nop 0")
    a("v_readfirstlane_b32 %s, v1" % sr(sW))
    a("v_and_b32 v1, 63, v0")
    a("v_and_b32 v2, 15, v1")
    a("v_lshrrev_b32 v3, 4, v1")
    vAO = 4
    vDO = 8
    vT0, vT1 = 13, 14
    AB = 20
    BB = AB + PA2 * 16
    NB = 4
    ACC = BB + NB * 4
    XR = 180
    B2R = 190
    a("s_lshl_b32 %s, %s, 6" % (sr(sT0), sr(sRT)))
    a("v_add_u32 v15, %s, v2" % sr(sT0))
    a("s_mov_b32 %s, %d" % (sr(sT1), A2_PITCH))
    a("v_mul_lo_u32 v15, v15, %s" % sr(sT1))
    a("v_lshl_add_u32 v4, v3, 4, v15")
    for b in range(1, 4):
        a("v_add_u32 %s, 0x%x, v4" % (vr(vAO + b), 16 * b * A2_PITCH))
    a("s_mul_i32 %s, %s, 17" % (sr(sKB), sr(sW)))
    a("s_lshl_b32 %s, %s, 6" % (sr(sAO), sr(sKB)))
    a("s_mul_i32 %s, %s, %d" % (sr(sLB), sr(sW), K2_RING))
    a("s_mul_i32 %s, %s, 160" % (sr(sT0), sr(sCG)))
    a("s_movk_i32 %s, 6554" % sr(sT1))
    for d in range(5):
        a("v_add_u32 v15, %d, v1" % (64 * d))
        a("v_mul_lo_u32 v16, v15, %s" % sr(sT1))
        a("v_lshrrev_b32 v16, 16, v16")
        a("v_mul_u32_u24 v17, 10, v16")
        a("v_sub_u32 v17, v15, v17")
        a("v_lshrrev_b32 v18, 1, v16")
        a("v_and_b32 v18, 4, v18")
        a("v_xor_b32 v16, v16, v18")
        a("v_mul_u32_u24 v16, 1280, v16")
        a("v_lshl_add_u32 v16, v17, 4, v16")
        a("v_add_u32 %s, %s, v16" % (vr(vDO + d), sr(sT0)))
    a("v_bfe_u32 v15, v1, 2, 2")
    a("v_and_b32 v16, 3, v1")
    a("v_and_b32 v17, 1, v3")
    a("v_lshl_add_u32 v15, v3, 3, v15")
    a("v_lshl_add_u32 v18, v17, 2, v15")
    a("v_xor_b32 v19, 4, v18")
    a("v_mul_u32_u24 v18, 160, v18")
    a("v_mul_u32_u24 v19, 160, v19")
    a("v_lshl_add_u32 v18, v16, 3, v18")
    a("v_lshl_add_u32 v19, v16, 3, v19")
    a("v_add_u32 v13, %s, v18" % sr(sLB))
    a("v_add_u32 v14, %s, v19" % sr(sLB))
    a("s_waitcnt lgkmcnt(0)")
    srd(a, sX, 36, S_TOK * D * 2)
    srd(a, sWO, 38, 640 * 640 * 2)
    srd(a, sW2, 40, 1536 * 640 * 2)
    srd(a, sB2, 42, 640 * 2)
    srd(a, sOUT, 44, S_TOK * D * 2)
    srd(a, sWS, 46, A2_BYTES)
    a("s_mov_b32 %s, 0x20000" % sr(sB + 3))

    def a_load(t):
        ab = AB + (t % PA2) * 16
        for b in range(4):
            a("buffer_load_dwordx4 %s, %s, %s, %s offen offset:%d" % (vr(ab + 4 * b, 4), vr(vAO + b), sr(sWS, 4), sr(sAO), 64 * t))
            a.vm_issue(("A", t))

    def dma(t):
        slot = t % K2_R
        a("s_add_u32 %s, %s, %d" % (sr(sT0), sr(sKB), t))
        a("s_sub_u32 %s, %s, 20" % (sr(sT1), sr(sT0)))
        a("s_cmp_lt_u32 %s, 20" % sr(sT0))
        a("s_cselect_b32 %s, %s, %s" % (sr(sT0), sr(sT0), sr(sT1)))
        a("s_cselect_b64 %s, %s, %s" % (sr(sB, 2), sr(sWO, 2), sr(sW2, 2)))
        a("s_cselect_b32 %s, %s, %s" % (sr(sB + 2), sr(sWO + 2), sr(sW2 + 2)))
        a("s_mul_i32 %s, %s, 40960" % (sr(sT0), sr(sT0)))
        for d in range(5):
            a("s_add_u32 m0, %s, 0x%x" % (sr(sLB), slot * K2_SLOT + d * 1024))
            a("s_nop 0")
            a("buffer_load_dwordx4 %s, %s, %s offen lds" % (vr(vDO + d), sr(sB, 4), sr(sT0)))
            a.vm_issue(("D", t))

    def tr_reads(n):
        t, cb = n // 5, n % 5
        buf = BB + (n % NB) * 4
        off = (t % K2_R) * K2_SLOT + cb * 32
        a("ds_read_b64_tr_b16 %s, v13 offset:%d" % (vr(buf, 2), off))
        a.lg_issue(("B", n))
        a("ds_read_b64_tr_b16 %s, v14 offset:%d" % (vr(buf + 2, 2), off))
        a.lg_issue(("B", n))

    for t in range(K2_R - 1):
        dma(t)
        if t < PA2:
            a_load(t)
    for i in range(80):
        a("v_mov_b32 %s, 0" % vr(ACC + i))
    PF = 3
    NFR = NK2 * 5
    a.wait(vm_tags=[("D", 0)])
    for n in range(PF):
        tr_reads(n)
    for t in range(NK2):
        a.comment("k2 k-step %d" % t)
        ab = AB + (t % PA2) * 16
        a.wait(vm_tags=[("A", t), ("D", min(t + 1, NK2 - 1))])
        for cb in range(5):
            n = 5 * t + cb
            if n + PF < NFR:
                tr_reads(n + PF)
            a.wait(lg_tags=[("B", n)])
            bb = BB + (n % NB) * 4
            for b in range(4):
                mfma(a, ACC + (b * 5 + cb) * 4, bb, ab + 4 * b)
        if t + PA2 < NK2:
            a_load(t + PA2)
        if t + K2_R - 1 < NK2:
            dma(t + K2_R - 1)
    a("s_lshl_b32 %s, %s, 6" % (sr(sT0), sr(sRT)))
    a("s_lshl_b32 %s, %s, 4" % (sr(sT1), sr(sW)))
    a("s_add_u32 %s, %s, %s" % (sr(sT0), sr(sT0), sr(sT1)))
    a("v_add_u32 v15, %s, v2" % sr(sT0))
    a("v_mul_u32_u24 v15, 1280, v15")
    a("s_mul_i32 %s, %s, 160" % (sr(sT0), sr(sCG)))
    a("v_lshl_add_u32 v16, v3, 3, %s" % sr(sT0))
    a("v_add_u32 v15, v15, v16")
    for cb in range(5):
        a("buffer_load_dwordx2 %s, v15, %s, 0 offen offset:%d" % (vr(XR + 2 * cb, 2), sr(sX, 4), 32 * cb))
        a("buffer_load_dwordx2 %s, v16, %s, 0 offen offset:%d" % (vr(B2R + 2 * cb, 2), sr(sB2, 4), 32 * cb))
    a("s_nop 7")
    a("v_lshlrev_b32 v17, 4, v1")
    a("v_add_u32 v18, %s, v17" % sr(sLB))
    for blk in range(20):
        a("ds_write_b128 v18, %s offset:%d" % (vr(ACC + 4 * blk, 4), 1024 * blk))
    a("s_waitcnt lgkmcnt(0)")
    a("s_barrier")
    a("s_mul_i32 %s, %s, 5120" % (sr(sT0), sr(sW)))
    a("v_add_u32 v18, %s, v17" % sr(sT0))
    RD = 20
    for w in range(4):
        if w == 2:
            a("v_add_u32 v18, 0x%x, v18" % (2 * K2_RING))
        for cb in range(5):
            a("ds_read_b128 %s, v18 offset:%d" % (vr(RD + (w * 5 + cb) * 4, 4), (w & 1) * K2_RING + 1024 * cb))
    a("s_waitcnt vmcnt(0) lgkmcnt(0)")
    for cb in range(5):
        for i in range(4):
            r0 = RD + cb * 4 + i
            a("v_add_f32 %s, %s, %s" % (vr(r0), vr(r0), vr(r0 + 20)))
            a("v_add_f32 %s, %s, %s" % (vr(r0 + 40), vr(r0 + 40), vr(r0 + 60)))
            a("v_add_f32 %s, %s, %s" % (vr(r0), vr(r0), vr(r0 + 40)))
            src = XR + 2 * cb + (i >> 1)
            bsrc = B2R + 2 * cb + (i >> 1)
            if i & 1:
                a("v_and_b32 v17, 0xffff0000, %s" % vr(src))
                a("v_and_b32 v19, 0xffff0000, %s" % vr(bsrc))
            else:
                a("v_lshlrev_b32 v17, 16, %s" % vr(src))
                a("v_lshlrev_b32 v19, 16, %s" % vr(bsrc))
            a("v_add_f32 %s, %s, v19" % (vr(r0), vr(r0)))
            a("v_add_f32 %s, %s, v17" % (vr(r0), vr(r0)))
        r0 = RD + cb * 4
        a("v_cvt_pk_bf16_f32 %s, %s, %s" % (vr(r0), vr(r0), vr(r0 + 1)))
        a("v_cvt_pk_bf16_f32 %s, %s, %s" % (vr(r0 + 1), vr(r0 + 2), vr(r0 + 3)))
        a("buffer_store_dwordx2 %s, v15, %s, 0 offen offset:%d" % (vr(r0, 2), sr(sOUT, 4), 32 * cb))
    a.label("k2_end")
    a("s_endpgm")


HEADER = open("cdna_kernels/%s.s.ref" % NAME).read().split("; Override launch")[0]


def desc(kn, vgpr, sgpr=80):
    acc = (vgpr + 3) // 4 * 4
    return """.p2align 6
.amdhsa_kernel %s
  .amdhsa_next_free_vgpr %d
  .amdhsa_next_free_sgpr %d
  .amdhsa_accum_offset %d
  .amdhsa_group_segment_fixed_size 0
  .amdhsa_kernarg_size 88
  .amdhsa_user_sgpr_count 2
  .amdhsa_user_sgpr_kernarg_segment_ptr 1
  .amdhsa_system_sgpr_workgroup_id_x 1
  .amdhsa_float_denorm_mode_32 3
.end_amdhsa_kernel
""" % (kn, vgpr, sgpr, acc)


def main():
    a = Asm()
    gen_k1(a)
    gen_k2(a)
    out = HEADER
    out += "; @launch kernel=k1_kernel grid=(256,1,1) block=(768,1,1) lds=%d\n" % K1_LDS
    out += "; @launch kernel=k2_kernel grid=(256,1,1) block=(256,1,1) lds=%d\n" % K2_LDS
    out += '.amdgcn_target "amdgcn-amd-amdhsa--gfx950"\n.text\n'
    out += "\n".join(a.lines) + "\n"
    out += '.section .rodata,"a"\n'
    out += desc("k1_kernel", 152)
    out += desc("k2_kernel", 200)
    path = sys.argv[1] if len(sys.argv) > 1 else "cdna_kernels/%s.s" % NAME
    open(path, "w").write(out)


main()
```

```python
import sys, struct

NAME = "parallel_sum__sliding_local_dilated__mixer_channel_mlp__prompt"


def f32bits(x):
    return struct.unpack("<I", struct.pack("<f", x))[0]


class Asm:
    def __init__(self):
        self.lines = []
        self.vm = []
        self.lg = []
        self.nlab = 0

    def __call__(self, s):
        self.lines.append("    " + s)

    def label(self, l):
        self.lines.append(l + ":")

    def comment(self, s):
        self.lines.append("    ; " + s)

    def reset_counters(self):
        self.vm = []
        self.lg = []

    def vm_issue(self, tag):
        self.vm.append(tag)
        assert len(self.vm) <= 63, "vmcnt overflow"

    def lg_issue(self, tag):
        self.lg.append(tag)

    def wait(self, vm_tags=(), lg_tags=()):
        parts = []
        if vm_tags:
            idx = [i for i, t in enumerate(self.vm) if t in vm_tags]
            if idx:
                last = max(idx)
                n = len(self.vm) - 1 - last
                parts.append("vmcnt(%d)" % n)
                self.vm = self.vm[last + 1:]
        if lg_tags:
            idx = [i for i, t in enumerate(self.lg) if t in lg_tags]
            if idx:
                last = max(idx)
                n = len(self.lg) - 1 - last
                assert n <= 15
                parts.append("lgkmcnt(%d)" % n)
                self.lg = self.lg[last + 1:]
        if parts:
            self("s_waitcnt " + " ".join(parts))

    def wait_all(self, vm=True, lg=True):
        p = []
        if vm:
            p.append("vmcnt(0)")
            self.vm = []
        if lg:
            p.append("lgkmcnt(0)")
            self.lg = []
        self("s_waitcnt " + " ".join(p))


STAMP = False
def stamp(a, idx, sW, nper):
    if not STAMP:
        return
    a("s_memtime s[70:71]")
    a("s_waitcnt lgkmcnt(0)")
    a("s_mul_i32 s72, %s, %d" % (sr(sW), nper * 4))
    a("s_add_u32 s72, s72, %d" % (idx * 4))
    a("s_cmp_lg_u32 s2, %d" % STAMPWG)
    a("s_cselect_b32 s72, 0x7ffffff0, s72")
    a("v_mov_b32 %s, s70" % vr(STV))
    a("v_mov_b32 %s, s72" % vr(STV + 1))
    a("buffer_store_dword %s, %s, s[76:79], 0 offen" % (vr(STV), vr(STV + 1)))
    a.lg = []
    a.vm.append("stamp")

def stamp_init(a):
    if not STAMP:
        return
    a("s_load_dwordx2 s[76:77], s[0:1], 72")
    a("s_waitcnt lgkmcnt(0)")
    a("s_and_b32 s77, s77, 0xffff")
    a("s_mov_b32 s78, 256")
    a("s_mov_b32 s79, 0x20000")

STV = 150
STAMPWG = 0

def vr(b, n=1):
    return "v%d" % b if n == 1 else "v[%d:%d]" % (b, b + n - 1)


def sr(b, n=1):
    return "s%d" % b if n == 1 else "s[%d:%d]" % (b, b + n - 1)


def mfma(a, d, x, y, c=None):
    a("v_mfma_f32_16x16x32_bf16 %s, %s, %s, %s" % (vr(d, 4), vr(x, 4), vr(y, 4), vr(d, 4) if c is None else c))


def srd(a, d, base, nbytes):
    a("s_mov_b32 %s, %s" % (sr(d), sr(base)))
    a("s_and_b32 %s, %s, 0xffff" % (sr(d + 1), sr(base + 1)))
    a("s_mov_b32 %s, 0x%x" % (sr(d + 2), nbytes))
    a("s_mov_b32 %s, 0x20000" % sr(d + 3))


S_TOK = 2048
D = 640
A2_PITCH = 2176 * 2
A2_BYTES = S_TOK * A2_PITCH
EPS = 1e-5
LOG2E = 1.4426950408889634
GC1 = 2.0 * 0.7978845608028654 * LOG2E
GC2 = GC1 * 0.044715
QK_SCALE = (20 ** -0.5) * LOG2E

REGION = 16384
AREG = 32768
SLOT = 51200
NSLOT = 3
STAT = NSLOT * SLOT
CS = STAT + 144 * 16
K1_LDS = CS + 224 * 4
QP = 304
PK = 49152
PKP = 672
NKS = 20
NCH = 10
RBP = 68 * 1024
WP_OFF = 128 * RBP
WS_BYTES = WP_OFF + 68 * 40 * 1024


def gen_k1(a):
    kn = "k1_kernel"
    a.lines.append(".globl %s" % kn)
    a.lines.append(".p2align 8")
    a.lines.append(".type %s,@function" % kn)
    a.label(kn)
    sX, sWQ, sW1, sB1, sWS, sPW = 8, 12, 16, 20, 24, 56
    sRT, sCG, sW, sRG, sCH, sE = 40, 41, 42, 43, 44, 45
    sT0, sT1, sT2, sT3 = 46, 47, 48, 49
    a("s_cmp_ge_u32 s2, 256")
    a("s_cbranch_scc1 k1_end")
    a("s_load_dwordx4 s[28:31], s[0:1], 0")
    a("s_load_dwordx4 s[32:35], s[0:1], 32")
    a("s_load_dwordx2 s[36:37], s[0:1], 80")
    a("s_load_dwordx2 s[60:61], s[0:1], 16")
    a("s_load_dwordx2 s[62:63], s[0:1], 48")
    a("s_and_b32 s3, s2, 7")
    a("s_lshr_b32 s4, s2, 3")
    a("s_and_b32 s5, s3, 1")
    a("s_lshl_b32 s5, s5, 3")
    a("s_and_b32 s6, s4, 7")
    a("s_add_u32 %s, s5, s6" % sr(sRT))
    a("s_lshr_b32 s5, s3, 1")
    a("s_lshl_b32 s5, s5, 2")
    a("s_lshr_b32 s6, s4, 3")
    a("s_add_u32 %s, s5, s6" % sr(sCG))
    a("v_lshrrev_b32 v1, 6, v0")
    a("s_nop 0")
    a("v_readfirstlane_b32 %s, v1" % sr(sW))
    a("v_and_b32 v1, 63, v0")
    a("v_and_b32 v2, 15, v1")
    a("v_lshrrev_b32 v3, 4, v1")
    a("v_bfe_u32 v30, v1, 2, 2")
    a("v_and_b32 v31, 3, v1")
    a("v_and_b32 v32, 1, v3")
    a("v_lshl_or_b32 v32, v32, 2, v30")
    a("v_lshl_add_u32 v33, v3, 3, v30")
    a("v_lshlrev_b32 v33, 8, v33")
    a("v_and_b32 v34, 1, v31")
    a("v_lshl_add_u32 v33, v34, 3, v33")
    a("v_lshrrev_b32 v34, 1, v31")
    a("v_lshlrev_b32 v32, 1, v32")
    a("v_lshrrev_b32 v29, 1, v2")
    a("v_xor_b32 v29, v29, v3")
    a("v_lshlrev_b32 v29, 4, v29")
    a("v_lshl_add_u32 v29, v2, 7, v29")
    a("s_waitcnt lgkmcnt(0)")
    srd(a, sX, 28, S_TOK * D * 2)
    srd(a, sWQ, 30, 640 * 1920 * 2)
    srd(a, sW1, 32, 640 * 1536 * 2)
    srd(a, sB1, 34, 1536 * 2)
    srd(a, sWS, 36, WS_BYTES)
    stamp_init(a)
    stamp(a, 0, sW, 5)
    a("s_cmp_ge_u32 %s, 8" % sr(sW))
    a("s_cbranch_scc1 k1_extra")

    def tr_addr(vd, sblk2, region):
        a("v_add_u32 v35, %s, v34" % sr(sblk2))
        a("v_xor_b32 v35, v35, v32")
        a("v_lshl_add_u32 %s, v35, 4, v33" % vr(vd))
        if region:
            a("v_add_u32 %s, 0x%x, %s" % (vr(vd), region * REGION, vr(vd)))

    def tr_reads(buf, addr_lo, addr_hi, t, tag):
        slot = (t // 2) % NSLOT
        base = addr_lo if slot < 2 else addr_hi
        off = (slot & 1) * SLOT + (t & 1) * 8192
        a("ds_read_b64_tr_b16 %s, %s offset:%d" % (vr(buf, 2), vr(base), off))
        a.lg_issue(tag)
        a("ds_read_b64_tr_b16 %s, %s offset:%d" % (vr(buf + 2, 2), vr(base), off + 1024))
        a.lg_issue(tag)

    def a_read(buf, addr4, t, tag):
        slot = (t // 2) % NSLOT
        base = addr4 + (0 if slot < 2 else 2) + (t & 1)
        a("ds_read_b128 %s, %s offset:%d" % (vr(buf, 4), vr(base), (slot & 1) * SLOT))
        a.lg_issue(tag)

    def a_addr(addr4, srow128):
        a("v_add_u32 %s, %s, v29" % (vr(addr4), sr(srow128)))
        a("v_xor_b32 %s, 64, %s" % (vr(addr4 + 1), vr(addr4)))
        a("v_add_u32 %s, 0x%x, %s" % (vr(addr4 + 2), 2 * SLOT, vr(addr4)))
        a("v_add_u32 %s, 0x%x, %s" % (vr(addr4 + 3), 2 * SLOT, vr(addr4 + 1)))

    def stats_compute(vsum, vsq4, out4, tmp):
        t0, t1, t2 = tmp, tmp + 1, tmp + 2
        a("v_and_b32 %s, 3, v2" % vr(t0))
        a("v_mov_b32 %s, %s" % (vr(t1), vr(vsq4)))
        for i in (1, 2, 3):
            a("v_cmp_eq_u32 vcc, %d, %s" % (i, vr(t0)))
            a("s_nop 1")
            a("v_cndmask_b32 %s, %s, %s, vcc" % (vr(t1), vr(t1), vr(vsq4 + i)))
        a("v_lshrrev_b32 %s, 2, v2" % vr(t0))
        a("v_lshl_add_u32 %s, %s, 4, v2" % (vr(t0), vr(t0)))
        a("v_lshlrev_b32 %s, 2, %s" % (vr(t0), vr(t0)))
        a("ds_bpermute_b32 %s, %s, %s" % (vr(t2), vr(t0), vr(t1)))
        a("s_waitcnt lgkmcnt(0)")
        a.lg = []
        a("v_mul_f32 %s, 0x%x, %s" % (vr(t0), f32bits(1.0 / 640), vr(vsum)))
        a("v_mul_f32 %s, 0x%x, %s" % (vr(t2), f32bits(1.0 / 640), vr(t2)))
        a("v_fma_f32 %s, -%s, %s, %s" % (vr(t2), vr(t0), vr(t0), vr(t2)))
        a("v_max_f32 %s, 0, %s" % (vr(t2), vr(t2)))
        a("v_add_f32 %s, 0x%x, %s" % (vr(t1), f32bits(EPS), vr(t2)))
        a("v_rsq_f32 %s, %s" % (vr(out4), vr(t1)))
        a("s_nop 0")
        a("v_mul_f32 %s, %s, %s" % (vr(t1), vr(out4), vr(out4)))
        a("v_mul_f32 %s, %s, %s" % (vr(t1), vr(t1), vr(t2)))
        a("v_add_f32 %s, 0x%x, %s" % (vr(t1), f32bits(EPS), vr(t1)))
        a("v_rsq_f32 %s, %s" % (vr(t1), vr(t1)))
        a("v_mul_f32 %s, %s, %s" % (vr(out4 + 1), vr(out4), vr(t0)))
        a("v_mul_f32 %s, %s, %s" % (vr(out4 + 2), vr(out4), vr(t1)))
        a("v_mul_f32 %s, %s, %s" % (vr(out4 + 3), vr(out4 + 2), vr(t0)))

    def qkv_pos(vd, sblk4, vrow, tmp):
        a("v_add_u32 %s, %s, v3" % (vr(tmp), sr(sblk4)))
        a("v_mul_u32_u24 %s, 52, %s" % (vr(tmp + 1), vr(tmp)))
        a("v_lshrrev_b32 %s, 8, %s" % (vr(tmp + 1), vr(tmp + 1)))
        a("v_add_u32 %s, %s, %s" % (vr(tmp), vr(tmp), vr(tmp + 1)))
        a("v_mul_u32_u24 %s, %d, %s" % (vr(vd), QP, vr(vrow)))
        a("v_lshl_add_u32 %s, %s, 3, %s" % (vr(vd), vr(tmp), vr(vd)))

    a.reset_counters()
    vTL, vTH = 6, 13
    vB1 = 20
    vONE = 36
    vAA0, vAA1 = 40, 44
    AB = 48
    BB = AB + 16
    NB = 5
    ACC = BB + NB * 4
    ST = ACC + 56
    a("s_and_b32 %s, %s, 3" % (sr(sRG), sr(sW)))
    a("s_lshr_b32 %s, %s, 2" % (sr(sCH), sr(sW)))
    a("s_mul_i32 %s, %s, 192" % (sr(sT0), sr(sCG)))
    a("s_mul_i32 %s, %s, 96" % (sr(sT1), sr(sCH)))
    a("s_add_u32 %s, %s, %s" % (sr(sT0), sr(sT0), sr(sT1)))
    a("v_lshlrev_b32 v35, 3, v3")
    a("v_add_u32 v35, %s, v35" % sr(sT0))
    for j in range(3):
        a("buffer_load_dwordx2 %s, v35, %s, 0 offen offset:%d" % (vr(vB1 + 2 * j, 2), sr(sB1, 4), 32 * j))
        a.vm_issue("b1")
    a("s_lshl_b32 %s, %s, 12" % (sr(sT0), sr(sRG)))
    a("s_lshl_b32 %s, %s, 11" % (sr(sT1), sr(sCH)))
    a("s_add_u32 %s, %s, %s" % (sr(sT2), sr(sT0), sr(sT1)))
    a("s_add_u32 %s, %s, %d" % (sr(sT2), sr(sT2), AREG + 2048))
    a("s_sub_u32 %s, %s, %s" % (sr(sT3), sr(sT0), sr(sT1)))
    a("s_add_u32 %s, %s, %d" % (sr(sT3), sr(sT3), AREG + 4096))
    a_addr(vAA0, sT2)
    a_addr(vAA1, sT3)
    for j in range(7):
        if j < 4:
            a("s_lshl_b32 %s, %s, 3" % (sr(sT0), sr(sCH)))
            a("s_add_u32 %s, %s, %d" % (sr(sT0), sr(sT0), 2 * j))
            tr_addr(vTL + j, sT0, 0)
        else:
            a("s_mul_i32 %s, %s, 6" % (sr(sT0), sr(sCH)))
            a("s_add_u32 %s, %s, %d" % (sr(sT0), sr(sT0), 2 * (j - 4)))
            tr_addr(vTL + j, sT0, 1)
        a("v_add_u32 %s, 0x%x, %s" % (vr(vTH + j), 2 * SLOT, vr(vTL + j)))
    for i in range(4):
        a("v_mov_b32 %s, 0x3f803f80" % vr(vONE + i))
    for i in range(64):
        a("v_mov_b32 %s, 0" % vr(ACC + i))
    a("s_barrier")
    stamp(a, 1, sW, 5)
    PF = 4
    NFR = NKS * 7
    a_read(AB, vAA0, 0, ("A", 0))
    a_read(AB + 4, vAA1, 0, ("A", 0))
    for n in range(PF):
        tr_reads(BB + (n % NB) * 4, vTL + n % 7, vTH + n % 7, n // 7, ("B", n))
    for t in range(NKS):
        a.comment("k-step %d" % t)
        ab = AB + (t % 2) * 8
        for j in range(7):
            n = 7 * t + j
            m = n + PF
            if j == 2 and t + 1 < NKS:
                nb = AB + ((t + 1) % 2) * 8
                a_read(nb, vAA0, t + 1, ("A", t + 1))
                a_read(nb + 4, vAA1, t + 1, ("A", t + 1))
            if m < NFR:
                tr_reads(BB + (m % NB) * 4, vTL + m % 7, vTH + m % 7, m // 7, ("B", m))
            a.wait(lg_tags=[("B", n), ("A", t)])
            bb = BB + (n % NB) * 4
            mfma(a, ACC + j * 4, bb, ab)
            mfma(a, ACC + 28 + j * 4, bb, ab + 4)
            if j == 3:
                mfma(a, ST + 4, ab, ab)
            if j == 5:
                mfma(a, ST, vONE, ab)
        if t < 18:
            a("s_barrier")
    a("s_nop 7")
    a("s_nop 3")
    stamp(a, 2, sW, 5)
    TMP = 36
    vST0 = 40
    vST1 = 44
    stats_compute(ST, ST + 4, vST0, TMP)
    a("s_lshl_b32 %s, %s, 5" % (sr(sT0), sr(sRG)))
    a("s_lshl_b32 %s, %s, 4" % (sr(sT1), sr(sCH)))
    a("s_add_u32 %s, %s, %s" % (sr(sT2), sr(sT0), sr(sT1)))
    a("s_add_u32 %s, %s, 16" % (sr(sT2), sr(sT2)))
    a("s_sub_u32 %s, %s, %s" % (sr(sT3), sr(sT0), sr(sT1)))
    a("s_add_u32 %s, %s, 32" % (sr(sT3), sr(sT3)))
    vRL0, vRL1 = 48, 49
    a("v_add_u32 v48, %s, v2" % sr(sT2))
    a("v_add_u32 v49, %s, v2" % sr(sT3))
    a("v_lshlrev_b32 v50, 4, v48")
    a("v_lshlrev_b32 v51, 4, v49")
    a("v_add_u32 v50, 0x%x, v50" % STAT)
    a("v_add_u32 v51, 0x%x, v51" % STAT)
    a("ds_write_b128 v50, %s" % vr(vST0, 4))
    a("s_waitcnt lgkmcnt(0)")
    a("s_barrier")
    a("ds_read_b128 %s, v51" % vr(vST1, 4))
    CSR = 52
    a("s_lshl_b32 %s, %s, 8" % (sr(sT0), sr(sCH)))
    a("s_add_u32 %s, %s, 0x%x" % (sr(sT0), sr(sT0), CS))
    a("v_lshl_add_u32 v36, v3, 4, %s" % sr(sT0))
    for j in range(4):
        a("ds_read_b128 %s, v36 offset:%d" % (vr(CSR + 4 * j, 4), 64 * j))
    a("s_mul_i32 %s, %s, 192" % (sr(sT0), sr(sCH)))
    a("s_add_u32 %s, %s, 0x%x" % (sr(sT0), sr(sT0), CS + 512))
    a("v_lshl_add_u32 v37, v3, 4, %s" % sr(sT0))
    for j in range(3):
        a("ds_read_b128 %s, v37 offset:%d" % (vr(CSR + 16 + 4 * j, 4), 64 * j))
    a("s_waitcnt lgkmcnt(0)")
    for j in range(4):
        a("s_lshl_b32 %s, %s, 4" % (sr(sT0), sr(sCH)))
        a("s_add_u32 %s, %s, %d" % (sr(sT0), sr(sT0), 4 * j))
        for b in range(2):
            st = vST0 if b == 0 else vST1
            acc = ACC + 28 * b + 4 * j
            for i in range(4):
                a("v_mul_f32 v80, %s, %s" % (vr(st + 1), vr(CSR + 4 * j + i)))
                a("v_fma_f32 %s, %s, %s, -v80" % (vr(acc + i), vr(acc + i), vr(st)))
            a("v_cvt_pk_bf16_f32 %s, %s, %s" % (vr(acc), vr(acc), vr(acc + 1)))
            a("v_cvt_pk_bf16_f32 %s, %s, %s" % (vr(acc + 1), vr(acc + 2), vr(acc + 3)))
            qkv_pos(38, sT0, vRL0 if b == 0 else vRL1, 36)
            a("ds_write_b64 v38, %s" % vr(acc, 2))
    a("s_waitcnt lgkmcnt(0)")
    a("s_barrier")
    stamp(a, 3, sW, 5)
    a.wait(vm_tags=["b1"])
    a("s_mul_i32 %s, %s, 6" % (sr(sT0), sr(sCG)))
    a("s_mul_i32 %s, %s, 3" % (sr(sT1), sr(sCH)))
    a("s_add_u32 %s, %s, %s" % (sr(sT0), sr(sT0), sr(sT1)))
    a("s_add_u32 %s, %s, 40" % (sr(sT0), sr(sT0)))
    a("s_lshl_b32 %s, %s, 9" % (sr(sT0), sr(sT0)))
    a("s_lshl_b32 %s, %s, 3" % (sr(sT1), sr(sRT)))
    a("s_lshl_b32 %s, %s, 1" % (sr(sT2), sr(sRG)))
    a("s_add_u32 %s, %s, %s" % (sr(sT1), sr(sT1), sr(sT2)))
    a("s_add_u32 %s, %s, %s" % (sr(sT2), sr(sT1), sr(sCH)))
    a("s_sub_u32 %s, %s, %s" % (sr(sT3), sr(sT1), sr(sCH)))
    a("s_add_u32 %s, %s, 1" % (sr(sT3), sr(sT3)))
    a("s_mul_i32 %s, %s, %d" % (sr(sT2), sr(sT2), RBP))
    a("s_mul_i32 %s, %s, %d" % (sr(sT3), sr(sT3), RBP))
    a("s_add_u32 %s, %s, %s" % (sr(sT2), sr(sT2), sr(sT0)))
    a("s_add_u32 %s, %s, %s" % (sr(sT3), sr(sT3), sr(sT0)))
    a("v_lshrrev_b32 v36, 1, v3")
    a("v_lshlrev_b32 v36, 8, v36")
    a("v_lshl_add_u32 v36, v2, 4, v36")
    a("v_and_b32 v37, 1, v3")
    a("v_lshl_add_u32 v36, v37, 3, v36")
    a("v_add_u32 v38, %s, v36" % sr(sT2))
    a("v_add_u32 v39, %s, v36" % sr(sT3))
    a("s_mov_b32 %s, 0x%x" % (sr(sT2), f32bits(GC1)))
    a("s_mov_b32 %s, 0x%x" % (sr(sT3), f32bits(GC2)))
    a("v_mov_b32 v37, %s" % sr(sT2))
    for j in range(3):
        a("v_lshlrev_b32 v80, 16, %s" % vr(vB1 + 2 * j))
        a("v_and_b32 v81, 0xffff0000, %s" % vr(vB1 + 2 * j))
        a("v_lshlrev_b32 v82, 16, %s" % vr(vB1 + 2 * j + 1))
        a("v_and_b32 v83, 0xffff0000, %s" % vr(vB1 + 2 * j + 1))
        for b in range(2):
            st = vST0 if b == 0 else vST1
            acc = ACC + 28 * b + 4 * (4 + j)
            T4 = 4
            for i in range(4):
                a("v_fma_f32 %s, -%s, %s, %s" % (vr(T4 + i), vr(st + 3), vr(CSR + 16 + 4 * j + i), vr(80 + i)))
            for i in range(4):
                a("v_fma_f32 %s, %s, %s, %s" % (vr(acc + i), vr(acc + i), vr(st + 2), vr(T4 + i)))
            for i in range(4):
                a("v_mul_f32 %s, %s, %s" % (vr(T4 + i), vr(acc + i), vr(acc + i)))
            for i in range(4):
                a("v_fma_f32 %s, %s, %s, v37" % (vr(T4 + i), vr(T4 + i), sr(sT3)))
            for i in range(4):
                a("v_mul_f32_e64 %s, -%s, %s" % (vr(T4 + i), vr(acc + i), vr(T4 + i)))
            for i in range(4):
                a("v_exp_f32 %s, %s" % (vr(T4 + i), vr(T4 + i)))
            for i in range(4):
                a("v_add_f32 %s, 1.0, %s" % (vr(T4 + i), vr(T4 + i)))
            for i in range(4):
                a("v_rcp_f32 %s, %s" % (vr(T4 + i), vr(T4 + i)))
            for i in range(4):
                a("v_mul_f32 %s, %s, %s" % (vr(acc + i), vr(acc + i), vr(T4 + i)))
            a("v_cvt_pk_bf16_f32 %s, %s, %s" % (vr(acc), vr(acc), vr(acc + 1)))
            a("v_cvt_pk_bf16_f32 %s, %s, %s" % (vr(acc + 1), vr(acc + 2), vr(acc + 3)))
            a("buffer_store_dwordx2 %s, %s, %s, 0 offen offset:%d" % (vr(acc, 2), vr(38 + b), sr(sWS, 4), 512 * j))
    a("v_and_b32 v4, 1, v0")
    a("v_bfe_u32 v5, v0, 1, 7")
    a("v_lshrrev_b32 v6, 8, v0")
    a("v_lshlrev_b32 v7, 3, v4")
    a("v_sub_u32 v7, v5, v7")
    a("v_add_u32 v7, 10, v7")
    a("v_mul_u32_u24 v7, %d, v7" % QP)
    a("v_mul_u32_u24 v8, 48, v6")
    a("v_add_u32 v7, v7, v8")
    a("v_add_u32 v9, 16, v5")
    a("v_mul_u32_u24 v9, %d, v9" % QP)
    a("v_add_u32 v9, v9, v8")
    Q, KK, VV = 20, 32, 80
    a("ds_read_b128 %s, v9 offset:192" % vr(Q, 4))
    a("ds_read_b128 %s, v9 offset:208" % vr(Q + 4, 4))
    a("ds_read_b64 %s, v9 offset:224" % vr(Q + 8, 2))
    for ww in range(4):
        off = (6 - 2 * ww) * QP
        a("ds_read_b128 %s, v7 offset:%d" % (vr(KK + 12 * ww, 4), off))
        a("ds_read_b128 %s, v7 offset:%d" % (vr(KK + 12 * ww + 4, 4), off + 16))
        a("ds_read_b64 %s, v7 offset:%d" % (vr(KK + 12 * ww + 8, 2), off + 32))
    a("s_waitcnt lgkmcnt(0)")
    for ww in range(4):
        off = (6 - 2 * ww) * QP + 96
        a("ds_read_b128 %s, v7 offset:%d" % (vr(VV + 12 * ww, 4), off))
        a("ds_read_b128 %s, v7 offset:%d" % (vr(VV + 12 * ww + 4, 4), off + 16))
        a("ds_read_b64 %s, v7 offset:%d" % (vr(VV + 12 * ww + 8, 2), off + 32))
    LG = 10
    for ww in range(4):
        a("v_mov_b32 %s, 0" % vr(LG + ww))
    for d in range(10):
        for ww in range(4):
            a("v_dot2_f32_bf16 %s, %s, %s, %s" % (vr(LG + ww), vr(Q + d), vr(KK + 12 * ww + d), vr(LG + ww)))
    a("s_lshl_b32 %s, %s, 7" % (sr(sT0), sr(sRT)))
    a("v_add_u32 v14, %s, v5" % sr(sT0))
    a("v_lshlrev_b32 v15, 3, v4")
    a("v_sub_u32 v14, v14, v15")
    a("v_mov_b32 v15, 0x%x" % f32bits(-1e9))
    a("v_mov_b32 v16, 0x%x" % f32bits(QK_SCALE))
    for ww in range(4):
        a("v_mul_f32 %s, %s, v16" % (vr(LG + ww), vr(LG + ww)))
        a("v_cmp_le_i32 vcc, %d, v14" % (2 * ww))
        a("s_nop 1")
        a("v_cndmask_b32 %s, v15, %s, vcc" % (vr(LG + ww), vr(LG + ww)))
    a("v_max_f32 v16, v10, v11")
    a("v_max3_f32 v16, v16, v12, v13")
    a("s_nop 1")
    a("v_max_f32_dpp v17, v16, v16 quad_perm:[1,0,3,2] row_mask:0xf bank_mask:0xf")
    for ww in range(4):
        a("v_sub_f32 %s, %s, v17" % (vr(LG + ww), vr(LG + ww)))
        a("v_exp_f32 %s, %s" % (vr(LG + ww), vr(LG + ww)))
    a("s_nop 0")
    a("v_add_f32 v16, v10, v11")
    a("v_add_f32 v18, v12, v13")
    a("v_add_f32 v16, v16, v18")
    a("s_nop 1")
    a("v_add_f32_dpp v17, v16, v16 quad_perm:[1,0,3,2] row_mask:0xf bank_mask:0xf")
    a("v_rcp_f32 v17, v17")
    a("s_nop 0")
    PL, PH = 20, 24
    for ww in range(4):
        a("v_mul_f32 %s, %s, v17" % (vr(LG + ww), vr(LG + ww)))
        a("v_cvt_pk_bf16_f32 %s, %s, 0" % (vr(PL + ww), vr(LG + ww)))
        a("v_lshlrev_b32 %s, 16, %s" % (vr(PH + ww), vr(PL + ww)))
    O = 32
    a("s_waitcnt lgkmcnt(0)")
    for d in range(10):
        a("v_dot2_f32_bf16 %s, %s, %s, 0" % (vr(O + 2 * d), vr(VV + d), vr(PL)))
        a("v_dot2_f32_bf16 %s, %s, %s, 0" % (vr(O + 2 * d + 1), vr(VV + d), vr(PH)))
    for ww in range(1, 4):
        for d in range(10):
            a("v_dot2_f32_bf16 %s, %s, %s, %s" % (vr(O + 2 * d), vr(VV + 12 * ww + d), vr(PL + ww), vr(O + 2 * d)))
            a("v_dot2_f32_bf16 %s, %s, %s, %s" % (vr(O + 2 * d + 1), vr(VV + 12 * ww + d), vr(PH + ww), vr(O + 2 * d + 1)))
    a("v_cmp_eq_u32 vcc, 1, v4")
    a("s_nop 1")
    R = 56
    for d in range(10):
        a("v_cndmask_b32 %s, %s, %s, vcc" % (vr(R + d), vr(O + d), vr(O + 10 + d)))
        a("v_cndmask_b32 %s, %s, %s, vcc" % (vr(R + 10 + d), vr(O + 10 + d), vr(O + d)))
    a("s_nop 1")
    for d in range(10):
        a("v_add_f32_dpp %s, %s, %s quad_perm:[1,0,3,2] row_mask:0xf bank_mask:0xf" % (vr(R + d), vr(R + 10 + d), vr(R + d)))
    for d in range(5):
        a("v_cvt_pk_bf16_f32 %s, %s, %s" % (vr(R + 20 + d), vr(R + 2 * d), vr(R + 2 * d + 1)))
    a("v_lshrrev_b32 v14, 4, v5")
    a("s_lshl_b32 %s, %s, 3" % (sr(sT1), sr(sRT)))
    a("v_add_u32 v14, %s, v14" % sr(sT1))
    a("s_mov_b32 %s, %d" % (sr(sT2), RBP))
    a("v_mul_lo_u32 v14, v14, %s" % sr(sT2))
    a("s_mul_i32 %s, %s, 1280" % (sr(sT1), sr(sCG)))
    a("v_and_b32 v15, 15, v5")
    a("v_lshl_add_u32 v14, v15, 4, v14")
    a("v_add_u32 v14, %s, v14" % sr(sT1))
    a("v_lshl_add_u32 v15, v6, 1, v4")
    a("v_lshl_add_u32 v16, v15, 8, v14")
    a("v_lshl_add_u32 v17, v15, 2, v14")
    a("buffer_store_dwordx4 %s, v16, %s, 0 offen" % (vr(R + 20, 4), sr(sWS, 4)))
    a("buffer_store_dword %s, v17, %s, 0 offen offset:1024" % (vr(R + 24), sr(sWS, 4)))
    stamp(a, 4, sW, 5)
    a("s_endpgm")

    a.label("k1_extra")
    a.reset_counters()
    vDQ, vDM, vDA, vDA2 = 20, 24, 28, 4
    vEA = 40
    EAB = 44
    EBB = EAB + 8
    EACC = EBB + NB * 4
    EST = EACC + 16
    EONES = 96
    PKR = 100
    a("s_sub_u32 %s, %s, 8" % (sr(sE), sr(sW)))
    a("s_and_b32 %s, %s, 1" % (sr(sT0), sr(sE)))
    a("s_lshl_b32 %s, %s, 2" % (sr(sT0), sr(sT0)))
    a("v_add_u32 v35, %s, v3" % sr(sT0))
    a("v_and_b32 v36, 7, v1")
    a("v_xor_b32 v35, v35, v36")
    a("s_lshl_b32 %s, %s, 7" % (sr(sT2), sr(sRT)))
    a("s_lshl_b32 %s, %s, 3" % (sr(sT1), sr(sE)))
    a("s_add_u32 %s, %s, %s" % (sr(sT2), sr(sT2), sr(sT1)))
    a("s_sub_u32 %s, %s, 16" % (sr(sT2), sr(sT2)))
    a("v_lshrrev_b32 v36, 3, v1")
    a("v_add_u32 v36, %s, v36" % sr(sT2))
    a("s_movk_i32 %s, 1280" % sr(sT3))
    a("v_mul_lo_u32 v36, v36, %s" % sr(sT3))
    a("v_lshl_add_u32 %s, v35, 4, v36" % vr(vDA))
    a("v_add_u32 %s, 0xa000, %s" % (vr(vDA2), vr(vDA)))
    sA5, sM5 = 51, 52
    a("s_and_b32 %s, %s, 1" % (sr(sT0), sr(sE)))
    a("s_add_u32 %s, %s, 16" % (sr(sT0), sr(sT0)))
    a("s_lshl_b32 %s, %s, 10" % (sr(sM5), sr(sT0)))
    a("s_sub_u32 %s, %s, %s" % (sr(sT0), sr(sT0), sr(sE)))
    a("s_mul_i32 %s, %s, 10240" % (sr(sA5), sr(sT0)))
    a("s_sub_u32 %s, %s, 40960" % (sr(sA5), sr(sA5)))
    a("s_mul_i32 %s, %s, 80" % (sr(sT0), sr(sCG)))
    a("s_mul_i32 %s, %s, 192" % (sr(sT1), sr(sCG)))
    for var in range(2):
        a("v_lshlrev_b32 v35, 1, v3")
        if var:
            a("v_or_b32 v35, 8, v35")
        a("v_xor_b32 v35, v35, v2")
        a("v_min_u32 v36, 14, v35")
        a("v_mul_u32_u24 v37, 52, v36")
        a("v_lshrrev_b32 v37, 8, v37")
        a("v_mul_u32_u24 v38, 5, v37")
        a("v_sub_u32 v38, v36, v38")
        a("v_add_u32 v39, 1, v37")
        a("v_cmp_eq_u32 vcc, 2, v37")
        a("s_nop 1")
        a("v_cndmask_b32 v39, v39, 0, vcc")
        a("v_mul_u32_u24 v39, 1280, v39")
        a("v_lshl_add_u32 v39, v38, 4, v39")
        a("v_add_u32 v39, %s, v39" % sr(sT0))
        a("v_min_u32 v40, 11, v35")
        a("v_lshlrev_b32 v40, 4, v40")
        a("v_add_u32 v40, %s, v40" % sr(sT1))
        for jl in range(2):
            jj = 2 * var + jl
            a("s_lshl_b32 %s, %s, 4" % (sr(sT2), sr(sE)))
            a("s_add_u32 %s, %s, %d" % (sr(sT2), sr(sT2), 4 * jj))
            a("v_add_u32 v41, %s, v3" % sr(sT2))
            a("v_mul_u32_u24 v42, 3840, v41")
            a("v_add_u32 %s, v42, v39" % vr(vDQ + jj))
            a("v_mul_u32_u24 v42, 3072, v41")
            a("v_add_u32 %s, v42, v40" % vr(vDM + jj))
    sEB, sEA = 50, 53
    a("s_lshl_b32 %s, %s, 12" % (sr(sEB), sr(sE)))
    a("s_lshl_b32 %s, %s, 10" % (sr(sEA), sr(sE)))

    def dma_chunk(c):
        slot = c % NSLOT
        for i in range(4):
            a("s_mov_b32 %s, 0x%x" % (sr(sT0), c * 128 + max(i - 1, 0) * 40960))
            a("s_add_u32 m0, %s, 0x%x" % (sr(sEA), slot * SLOT + AREG + i * 4096))
            a("s_nop 0")
            a("buffer_load_dwordx4 %s, %s, %s offen lds" % (vr(vDA2 if i else vDA), sr(sX, 4), sr(sT0)))
            a.vm_issue(("D", c))
        a("s_add_u32 %s, %s, 0x%x" % (sr(sT0), sr(sA5), c * 128))
        a("s_add_u32 m0, %s, 0x%x" % (sr(sM5), slot * SLOT + AREG))
        a("s_nop 0")
        a("buffer_load_dwordx4 %s, %s, %s offen lds" % (vr(vDA2), sr(sX, 4), sr(sT0)))
        a.vm_issue(("D", c))
        a("s_mov_b32 %s, 0x%x" % (sr(sT0), c * 64 * 3840))
        a("s_mov_b32 %s, 0x%x" % (sr(sT1), c * 64 * 3072))
        for jj in range(4):
            a("s_add_u32 m0, %s, 0x%x" % (sr(sEB), slot * SLOT + jj * 1024))
            a("s_nop 0")
            a("buffer_load_dwordx4 %s, %s, %s offen lds" % (vr(vDQ + jj), sr(sWQ, 4), sr(sT0)))
            a.vm_issue(("D", c))
        for jj in range(4):
            a("s_add_u32 m0, %s, 0x%x" % (sr(sEB), slot * SLOT + REGION + jj * 1024))
            a("s_nop 0")
            a("buffer_load_dwordx4 %s, %s, %s offen lds" % (vr(vDM + jj), sr(sW1, 4), sr(sT1)))
            a.vm_issue(("D", c))

    dma_chunk(0)
    dma_chunk(1)
    dma_chunk(2)
    sPT = 54
    a("s_lshr_b32 %s, s2, 1" % sr(sPT))
    a("s_mov_b32 %s, 0x%x" % (sr(sT0), 640 * 640 * 2))
    a("s_cmp_lt_u32 %s, 20" % sr(sPT))
    a("s_cselect_b64 %s, s[60:61], s[62:63]" % sr(sPW, 2))
    a("s_cselect_b32 %s, %s, 0x%x" % (sr(sPW + 2), sr(sT0), 1536 * 640 * 2))
    a("s_cselect_b32 %s, 0, 640" % sr(sT1))
    a("s_cselect_b32 s64, 1, 0")
    a("s_and_b32 %s, %s, 0xffff" % (sr(sPW + 1), sr(sPW + 1)))
    a("s_mov_b32 %s, 0x20000" % sr(sPW + 3))
    a("s_lshl_b32 %s, %s, 5" % (sr(sT0), sr(sPT)))
    a("s_sub_u32 %s, %s, %s" % (sr(sT0), sr(sT0), sr(sT1)))
    a("s_lshl_b32 %s, %s, 3" % (sr(sT1), sr(sE)))
    a("s_add_u32 %s, %s, %s" % (sr(sT0), sr(sT0), sr(sT1)))
    a("s_and_b32 %s, s2, 1" % sr(sT1))
    a("s_mul_i32 %s, %s, 640" % (sr(sT1), sr(sT1)))
    a("s_movk_i32 %s, 1639" % sr(sT2))
    a("s_cmp_eq_u32 s64, 1")
    a("s_cselect_b64 s[66:67], -1, 0")
    a("s_cmp_ge_u32 s2, 136")
    a("s_cselect_b32 s65, 0x7ff00000, 0")
    vPS = 120
    for d in range(5):
        a("v_add_u32 v35, %d, v1" % (64 * d))
        a("v_mul_lo_u32 v36, v35, %s" % sr(sT2))
        a("v_lshrrev_b32 v36, 16, v36")
        a("v_mul_u32_u24 v37, 40, v36")
        a("v_sub_u32 v37, v35, v37")
        a("s_lshl_b32 %s, %s, 3" % (sr(sT3), sr(sE)))
        a("v_add_u32 v38, %s, v36" % sr(sT3))
        a("v_lshrrev_b32 v39, 1, v38")
        a("v_and_b32 v39, 4, v39")
        a("v_xor_b32 v38, v38, v39")
        a("v_mul_u32_u24 v38, %d, v38" % PKP)
        a("v_lshl_add_u32 v38, v37, 4, v38")
        a("v_add_u32 %s, 0x%x, v38" % (vr(vPS + d), PK))
        a("v_add_u32 v36, %s, v36" % sr(sT0))
        a("v_mul_lo_u32 v38, v36, %s" % sr(sT2))
        a("v_lshrrev_b32 v38, 16, v38")
        a("v_mul_u32_u24 v39, 40, v38")
        a("v_sub_u32 v40, v36, v39")
        a("v_lshrrev_b32 v41, 3, v40")
        a("v_mul_u32_u24 v41, 10, v41")
        a("v_and_b32 v42, 7, v40")
        a("v_add_u32 v41, v41, v42")
        a("v_subrev_u32 v42, 32, v40")
        a("v_lshrrev_b32 v42, 1, v42")
        a("v_mul_u32_u24 v42, 10, v42")
        a("v_and_b32 v43, 1, v40")
        a("v_add3_u32 v42, v42, v43, 8")
        a("v_cmp_gt_u32 vcc, 32, v40")
        a("s_nop 1")
        a("v_cndmask_b32 v41, v42, v41, vcc")
        a("v_add_u32 v41, v41, v39")
        a("v_cndmask_b32 v36, v36, v41, s[66:67]")
        a("v_mul_u32_u24 v36, 1280, v36")
        a("v_lshl_add_u32 v36, v37, 4, v36")
        a("v_add_u32 v36, %s, v36" % sr(sT1))
        a("v_add_u32 v36, s65, v36")
        a("buffer_load_dwordx4 %s, v36, %s, 0 offen" % (vr(PKR + 4 * d, 4), sr(sPW, 4)))
        a.vm_issue("P")
    a("s_movk_i32 %s, 0x%x" % (sr(sT0), AREG) if AREG < 32768 else "s_mov_b32 %s, 0x%x" % (sr(sT0), AREG))
    a_addr(vEA, sT0)
    for i in range(4):
        a("s_lshl_b32 %s, %s, 2" % (sr(sT0), sr(sE)))
        a("s_add_u32 %s, %s, %d" % (sr(sT0), sr(sT0), i))
        a("s_cmp_lt_u32 %s, 14" % sr(sT0))
        a("s_cselect_b32 %s, %s, 0" % (sr(sT0), sr(sT0)))
        a("s_and_b32 %s, %s, 7" % (sr(sT1), sr(sT0)))
        a("s_lshl_b32 %s, %s, 1" % (sr(sT1), sr(sT1)))
        a("s_lshr_b32 %s, %s, 3" % (sr(sT0), sr(sT0)))
        a("s_lshl_b32 %s, %s, 14" % (sr(sT0), sr(sT0)))
        tr_addr(vTL + i, sT1, 0)
        a("v_add_u32 %s, %s, %s" % (vr(vTL + i), sr(sT0), vr(vTL + i)))
        a("v_add_u32 %s, 0x%x, %s" % (vr(vTH + i), 2 * SLOT, vr(vTL + i)))
    for i in range(4):
        a("v_mov_b32 %s, 0x3f803f80" % vr(EONES + i))
    for i in range(24):
        a("v_mov_b32 %s, 0" % vr(EACC + i))
    a("v_cmp_eq_u32 s[68:69], 0, v2")
    a.wait(vm_tags=[("D", 0)])
    a("s_barrier")
    stamp(a, 1, sW, 5)
    NFR = NKS * 4
    a_read(EAB, vEA, 0, ("A", 0))
    for n in range(PF):
        tr_reads(EBB + (n % NB) * 4, vTL + n % 4, vTH + n % 4, n // 4, ("B", n))
    for t in range(NKS):
        a.comment("extra k-step %d" % t)
        ab = EAB + (t % 2) * 4
        a.wait(lg_tags=[("A", t)])
        for i in range(4):
            a("v_cndmask_b32 %s, %s, %s, s[68:69]" % (vr(ab + i), vr(ab + i), vr(EONES)))
        if t + 1 < NKS:
            a_read(EAB + ((t + 1) % 2) * 4, vEA, t + 1, ("A", t + 1))
        a("s_nop 0")
        mfma(a, EST + 4, ab, ab)
        mfma(a, EST, EONES, ab)
        for j in range(4):
            n = 4 * t + j
            m = n + PF
            a.wait(lg_tags=[("B", n)])
            mfma(a, EACC + j * 4, EBB + (n % NB) * 4, ab)
            if m < NFR:
                tr_reads(EBB + (m % NB) * 4, vTL + m % 4, vTH + m % 4, m // 4, ("B", m))
        if t < 18:
            c = t // 2
            if t % 2 == 0:
                a.wait(vm_tags=[("D", c + 1)])
                a("s_barrier")
            else:
                a("s_barrier")
                if c + 3 < NCH:
                    dma_chunk(c + 3)
    a("s_nop 7")
    a("s_nop 3")
    stamp(a, 2, sW, 5)
    vES = 40
    stats_compute(EST, EST + 4, vES, 36)
    a("v_lshlrev_b32 v36, 4, v2")
    a("v_add_u32 v36, 0x%x, v36" % STAT)
    a("ds_write_b128 v36, %s" % vr(vES, 4))
    a("s_lshl_b32 %s, %s, 8" % (sr(sT0), sr(sE)))
    a("s_add_u32 %s, %s, 0x%x" % (sr(sT0), sr(sT0), CS))
    a("v_lshl_add_u32 v36, v3, 4, %s" % sr(sT0))
    a("s_mov_b64 s[66:67], exec")
    a("s_mov_b64 exec, s[68:69]")
    a("ds_write_b128 v36, %s offset:0" % vr(EACC, 4))
    a("ds_write_b128 v36, %s offset:64" % vr(EACC + 4, 4))
    a("s_cmp_eq_u32 %s, 3" % sr(sE))
    a("s_cbranch_scc1 k1_x_skipcs")
    a("ds_write_b128 v36, %s offset:128" % vr(EACC + 8, 4))
    a("ds_write_b128 v36, %s offset:192" % vr(EACC + 12, 4))
    a.label("k1_x_skipcs")
    a("s_mov_b64 exec, s[66:67]")
    a("s_waitcnt lgkmcnt(0)")
    a("s_barrier")
    a.wait(vm_tags=["P"])
    for d in range(5):
        a("ds_write_b128 %s, %s" % (vr(vPS + d), vr(PKR + 4 * d, 4)))
    a("s_cmp_ge_u32 %s, 2" % sr(sE))
    a("s_cbranch_scc1 k1_x_done")
    for i in range(4):
        a("ds_read_b128 %s, v36 offset:%d" % (vr(48 + 4 * i, 4), 64 * i))
    a("s_waitcnt lgkmcnt(0)")
    for i in range(4):
        if i == 1:
            a("s_cmp_eq_u32 %s, 1" % sr(sE))
            a("s_cbranch_scc1 k1_x_done")
        a("s_lshl_b32 %s, %s, 4" % (sr(sT0), sr(sE)))
        a("s_add_u32 %s, %s, %d" % (sr(sT0), sr(sT0), 4 * i))
        acc = EACC + 4 * i
        for k in range(4):
            a("v_mul_f32 v64, %s, %s" % (vr(vES + 1), vr(48 + 4 * i + k)))
            a("v_fma_f32 %s, %s, %s, -v64" % (vr(acc + k), vr(acc + k), vr(vES)))
        a("v_cvt_pk_bf16_f32 %s, %s, %s" % (vr(acc), vr(acc), vr(acc + 1)))
        a("v_cvt_pk_bf16_f32 %s, %s, %s" % (vr(acc + 1), vr(acc + 2), vr(acc + 3)))
        qkv_pos(66, sT0, 2, 64)
        a("ds_write_b64 v66, %s" % vr(acc, 2))
    a.label("k1_x_done")
    a("s_waitcnt lgkmcnt(0)")
    a("s_barrier")
    a("s_cmp_ge_u32 s2, 136")
    a("s_cbranch_scc1 k1_end")
    a("v_and_b32 v36, 1, v3")
    a("v_lshl_add_u32 v37, v3, 3, v30")
    a("v_lshl_add_u32 v37, v36, 2, v37")
    a("v_xor_b32 v38, 4, v37")
    a("v_mul_u32_u24 v37, %d, v37" % PKP)
    a("v_mul_u32_u24 v38, %d, v38" % PKP)
    a("v_lshl_add_u32 v37, v31, 3, v37")
    a("v_lshl_add_u32 v38, v31, 3, v38")
    a("s_mul_i32 %s, %s, 160" % (sr(sT0), sr(sE)))
    a("s_add_u32 %s, %s, 0x%x" % (sr(sT0), sr(sT0), PK))
    a("v_add_u32 v37, %s, v37" % sr(sT0))
    a("v_add_u32 v38, %s, v38" % sr(sT0))
    for cb in range(5):
        a("ds_read_b64_tr_b16 %s, v37 offset:%d" % (vr(PKR + 4 * cb, 2), 32 * cb))
        a("ds_read_b64_tr_b16 %s, v38 offset:%d" % (vr(PKR + 4 * cb + 2, 2), 32 * cb))
    a("s_mul_i32 %s, s2, 20" % sr(sT0))
    a("s_mul_i32 %s, %s, 5" % (sr(sT1), sr(sE)))
    a("s_add_u32 %s, %s, %s" % (sr(sT0), sr(sT0), sr(sT1)))
    a("s_lshl_b32 %s, %s, 10" % (sr(sT0), sr(sT0)))
    a("s_add_u32 %s, %s, 0x%x" % (sr(sT0), sr(sT0), WP_OFF))
    a("v_lshl_add_u32 v39, v1, 4, %s" % sr(sT0))
    a("v_add_u32 v40, 0x1000, v39")
    a("s_waitcnt lgkmcnt(0)")
    for cb in range(4):
        a("buffer_store_dwordx4 %s, v39, %s, 0 offen offset:%d" % (vr(PKR + 4 * cb, 4), sr(sWS, 4), 1024 * cb))
    a("buffer_store_dwordx4 %s, v40, %s, 0 offen" % (vr(PKR + 16, 4), sr(sWS, 4)))
    a.label("k1_end")
    a("s_endpgm")


K2_LDS = 4 * 20480
PD = 6
NK2 = 17


def gen_k2(a):
    kn = "k2_kernel"
    a.lines.append(".globl %s" % kn)
    a.lines.append(".p2align 8")
    a.lines.append(".type %s,@function" % kn)
    a.label(kn)
    a.reset_counters()
    sX, sB2, sWS, sOUT = 8, 12, 16, 20
    sRT, sCG, sW, sT0, sT1, sT2, sBO = 50, 51, 52, 53, 54, 55, 56
    sAO = 60
    a("s_cmp_ge_u32 s2, 256")
    a("s_cbranch_scc1 k2_end")
    a("s_load_dwordx2 s[36:37], s[0:1], 0")
    a("s_load_dwordx4 s[40:43], s[0:1], 56")
    a("s_load_dwordx2 s[46:47], s[0:1], 80")
    a("s_and_b32 s3, s2, 7")
    a("s_lshr_b32 s4, s2, 3")
    a("s_lshl_b32 s5, s3, 2")
    a("s_and_b32 s6, s4, 3")
    a("s_add_u32 %s, s5, s6" % sr(sRT))
    a("s_lshr_b32 %s, s4, 2" % sr(sCG))
    a("v_lshrrev_b32 v1, 6, v0")
    a("s_nop 0")
    a("v_readfirstlane_b32 %s, v1" % sr(sW))
    a("v_and_b32 v1, 63, v0")
    a("v_and_b32 v2, 15, v1")
    a("v_lshrrev_b32 v3, 4, v1")
    a("v_lshlrev_b32 v4, 4, v1")
    a("v_add_u32 v5, 0x1000, v4")
    FB = 20
    XR = FB + PD * 36
    B2R = XR + 10
    a("s_mul_i32 %s, %s, 17" % (sr(sT0), sr(sW)))
    a("s_mul_i32 %s, %s, %d" % (sr(sT1), sr(sRT), 4 * RBP))
    a("s_lshl_b32 %s, %s, 10" % (sr(sT2), sr(sT0)))
    a("s_add_u32 %s, %s, %s" % (sr(sAO), sr(sT1), sr(sT2)))
    for b in range(1, 4):
        a("s_add_u32 %s, %s, %d" % (sr(sAO + b), sr(sAO), b * RBP))
    a("s_mul_i32 %s, %s, 40960" % (sr(sT1), sr(sT0)))
    a("s_mul_i32 %s, %s, 5120" % (sr(sT2), sr(sCG)))
    a("s_add_u32 %s, %s, %s" % (sr(sBO), sr(sT1), sr(sT2)))
    a("s_add_u32 %s, %s, 0x%x" % (sr(sBO), sr(sBO), WP_OFF))
    a("s_waitcnt lgkmcnt(0)")
    srd(a, sX, 36, S_TOK * D * 2)
    srd(a, sB2, 40, 640 * 2)
    srd(a, sOUT, 42, S_TOK * D * 2)
    srd(a, sWS, 46, WS_BYTES)
    global STV
    STV = 6
    stamp_init(a)
    stamp(a, 0, sW, 5)

    def loads(t):
        fb = FB + (t % PD) * 36
        for cb in range(5):
            if cb < 4:
                a("buffer_load_dwordx4 %s, v4, %s, %s offen offset:%d" % (vr(fb + 16 + 4 * cb, 4), sr(sWS, 4), sr(sBO), 1024 * cb))
            else:
                a("buffer_load_dwordx4 %s, v5, %s, %s offen" % (vr(fb + 16 + 4 * cb, 4), sr(sWS, 4), sr(sBO)))
            a.vm_issue(("F", t))
        for b in range(4):
            a("buffer_load_dwordx4 %s, v4, %s, %s offen offset:%d" % (vr(fb + 4 * b, 4), sr(sWS, 4), sr(sAO + b), 1024 * (t % 4)))
            a.vm_issue(("F", t))
        a("s_add_u32 %s, %s, 40960" % (sr(sBO), sr(sBO)))
        if t % 4 == 3:
            for b in range(4):
                a("s_add_u32 %s, %s, 4096" % (sr(sAO + b), sr(sAO + b)))

    for t in range(PD):
        loads(t)
    for t in range(NK2):
        a.comment("k2 k-step %d" % t)
        fb = FB + (t % PD) * 36
        a.wait(vm_tags=[("F", t)])
        if t == 0:
            stamp(a, 1, sW, 5)
        for cb in range(5):
            for b in range(4):
                d = (b * 5 + cb) * 4
                ar = "a[%d:%d]" % (d, d + 3)
                a("v_mfma_f32_16x16x32_bf16 %s, %s, %s, %s" % (ar, vr(fb + 16 + 4 * cb, 4), vr(fb + 4 * b, 4), ar if t else "0"))
        if t + PD < NK2:
            loads(t + PD)
    stamp(a, 2, sW, 5)
    a("s_lshl_b32 %s, %s, 6" % (sr(sT0), sr(sRT)))
    a("s_lshl_b32 %s, %s, 4" % (sr(sT1), sr(sW)))
    a("s_add_u32 %s, %s, %s" % (sr(sT0), sr(sT0), sr(sT1)))
    a("v_add_u32 v15, %s, v2" % sr(sT0))
    a("v_mul_u32_u24 v15, 1280, v15")
    a("s_mul_i32 %s, %s, 160" % (sr(sT0), sr(sCG)))
    a("v_lshl_add_u32 v16, v3, 3, %s" % sr(sT0))
    a("v_add_u32 v15, v15, v16")
    for cb in range(5):
        a("buffer_load_dwordx2 %s, v15, %s, 0 offen offset:%d" % (vr(XR + 2 * cb, 2), sr(sX, 4), 32 * cb))
        a("buffer_load_dwordx2 %s, v16, %s, 0 offen offset:%d" % (vr(B2R + 2 * cb, 2), sr(sB2, 4), 32 * cb))
    a("s_nop 7")
    a("s_mul_i32 %s, %s, 20480" % (sr(sT0), sr(sW)))
    a("v_add_u32 v18, %s, v4" % sr(sT0))
    for blk in range(20):
        a("ds_write_b128 v18, a[%d:%d] offset:%d" % (4 * blk, 4 * blk + 3, 1024 * blk))
    a("s_waitcnt lgkmcnt(0)")
    a("s_barrier")
    a("s_mul_i32 %s, %s, 5120" % (sr(sT0), sr(sW)))
    a("v_add_u32 v18, %s, v4" % sr(sT0))
    RD = 20
    a("v_add_u32 v17, 0x%x, v18" % 40960)
    for w in range(4):
        for cb in range(5):
            a("ds_read_b128 %s, %s offset:%d" % (vr(RD + (w * 5 + cb) * 4, 4), "v18" if w < 2 else "v17", (w & 1) * 20480 + 1024 * cb))
    a("s_waitcnt vmcnt(0) lgkmcnt(0)")
    for cb in range(5):
        for i in range(4):
            r0 = RD + cb * 4 + i
            a("v_add_f32 %s, %s, %s" % (vr(r0), vr(r0), vr(r0 + 20)))
            a("v_add_f32 %s, %s, %s" % (vr(r0 + 40), vr(r0 + 40), vr(r0 + 60)))
            a("v_add_f32 %s, %s, %s" % (vr(r0), vr(r0), vr(r0 + 40)))
            src = XR + 2 * cb + (i >> 1)
            bsrc = B2R + 2 * cb + (i >> 1)
            if i & 1:
                a("v_and_b32 v17, 0xffff0000, %s" % vr(src))
                a("v_and_b32 v19, 0xffff0000, %s" % vr(bsrc))
            else:
                a("v_lshlrev_b32 v17, 16, %s" % vr(src))
                a("v_lshlrev_b32 v19, 16, %s" % vr(bsrc))
            a("v_add_f32 %s, %s, v19" % (vr(r0), vr(r0)))
            a("v_add_f32 %s, %s, v17" % (vr(r0), vr(r0)))
        r0 = RD + cb * 4
        a("v_cvt_pk_bf16_f32 %s, %s, %s" % (vr(r0), vr(r0), vr(r0 + 1)))
        a("v_cvt_pk_bf16_f32 %s, %s, %s" % (vr(r0 + 1), vr(r0 + 2), vr(r0 + 3)))
        a("buffer_store_dwordx2 %s, v15, %s, 0 offen offset:%d" % (vr(r0, 2), sr(sOUT, 4), 32 * cb))
    stamp(a, 3, sW, 5)
    a.label("k2_end")
    a("s_endpgm")


HEADER = open("cdna_kernels/%s.s.ref" % NAME).read().split("; Override launch")[0]


def desc(kn, vgpr, sgpr=80, agpr=0):
    acc = (vgpr + 3) // 4 * 4
    if agpr:
        vgpr = acc + agpr
    return """.p2align 6
.amdhsa_kernel %s
  .amdhsa_next_free_vgpr %d
  .amdhsa_next_free_sgpr %d
  .amdhsa_accum_offset %d
  .amdhsa_group_segment_fixed_size 0
  .amdhsa_kernarg_size 88
  .amdhsa_user_sgpr_count 2
  .amdhsa_user_sgpr_kernarg_segment_ptr 1
  .amdhsa_system_sgpr_workgroup_id_x 1
  .amdhsa_float_denorm_mode_32 3
.end_amdhsa_kernel
""" % (kn, vgpr, sgpr, acc)


def main():
    global STAMP
    STAMP = "--stamp" in sys.argv
    a = Asm()
    gen_k1(a)
    gen_k2(a)
    out = HEADER
    out += "; @launch kernel=k1_kernel grid=(256,1,1) block=(768,1,1) lds=%d\n" % K1_LDS
    out += "; @launch kernel=k2_kernel grid=(256,1,1) block=(256,1,1) lds=%d\n" % K2_LDS
    out += '.amdgcn_target "amdgcn-amd-amdhsa--gfx950"\n.text\n'
    out += "\n".join(a.lines) + "\n"
    out += '.section .rodata,"a"\n'
    out += desc("k1_kernel", 152, 96)
    out += desc("k2_kernel", 256, 96, 80)
    path = sys.argv[1] if len(sys.argv) > 1 else "cdna_kernels/%s.s" % NAME
    open(path, "w").write(out)


main()
```

```python
import sys, struct

NAME = "parallel_sum__sliding_local_dilated__mixer_channel_mlp__prompt"


def f32bits(x):
    return struct.unpack("<I", struct.pack("<f", x))[0]


class Asm:
    def __init__(self):
        self.lines = []
        self.vm = []
        self.lg = []
        self.nlab = 0

    def __call__(self, s):
        self.lines.append("    " + s)

    def label(self, l):
        self.lines.append(l + ":")

    def comment(self, s):
        self.lines.append("    ; " + s)

    def reset_counters(self):
        self.vm = []
        self.lg = []

    def vm_issue(self, tag):
        self.vm.append(tag)
        assert len(self.vm) <= 63, "vmcnt overflow"

    def lg_issue(self, tag):
        self.lg.append(tag)

    def wait(self, vm_tags=(), lg_tags=()):
        parts = []
        if vm_tags:
            idx = [i for i, t in enumerate(self.vm) if t in vm_tags]
            if idx:
                last = max(idx)
                n = len(self.vm) - 1 - last
                parts.append("vmcnt(%d)" % n)
                self.vm = self.vm[last + 1:]
        if lg_tags:
            idx = [i for i, t in enumerate(self.lg) if t in lg_tags]
            if idx:
                last = max(idx)
                n = len(self.lg) - 1 - last
                assert n <= 15
                parts.append("lgkmcnt(%d)" % n)
                self.lg = self.lg[last + 1:]
        if parts:
            self("s_waitcnt " + " ".join(parts))

    def wait_all(self, vm=True, lg=True):
        p = []
        if vm:
            p.append("vmcnt(0)")
            self.vm = []
        if lg:
            p.append("lgkmcnt(0)")
            self.lg = []
        self("s_waitcnt " + " ".join(p))


STAMP = False
def stamp(a, idx, sW, nper):
    if not STAMP:
        return
    a("s_memtime s[100:101]")
    a("s_waitcnt lgkmcnt(0)")
    a("s_mul_i32 s7, %s, %d" % (sr(sW), nper * 4))
    a("s_add_u32 s7, s7, %d" % (idx * 4))
    a("s_cmp_lg_u32 s2, %d" % STAMPWG)
    a("s_cselect_b32 s7, 0x7ffffff0, s7")
    a("v_mov_b32 %s, s100" % vr(STV))
    a("v_mov_b32 %s, s7" % vr(STV + 1))
    a("buffer_store_dword %s, %s, s[96:99], 0 offen" % (vr(STV), vr(STV + 1)))
    a.lg = []
    a.vm.append("stamp")

FINE = False
def fstamp(a, idx, sW):
    if not FINE:
        return
    a("s_memtime s[100:101]")
    a("s_waitcnt lgkmcnt(0)")
    a("s_lshr_b32 s7, %s, 2" % sr(sW))
    a("s_mul_i32 s7, s7, 84")
    a("s_add_u32 s7, s7, %d" % (idx * 4))
    a("s_and_b32 s101, %s, 3" % sr(sW))
    a("s_or_b32 s101, s101, s2")
    a("s_cmp_lg_u32 s101, 0")
    a("s_cselect_b32 s7, 0x7ffffff0, s7")
    a("v_mov_b32 %s, s100" % vr(STV))
    a("v_mov_b32 %s, s7" % vr(STV + 1))
    a("buffer_store_dword %s, %s, s[96:99], 0 offen" % (vr(STV), vr(STV + 1)))
    a.lg = []
    a.vm.append("stamp")

def stamp_init(a):
    if FINE:
        a("s_load_dwordx2 s[96:97], s[0:1], 72")
        a("s_waitcnt lgkmcnt(0)")
        a("s_and_b32 s97, s97, 0xffff")
        a("s_mov_b32 s98, 256")
        a("s_mov_b32 s99, 0x20000")
        return
    if not STAMP:
        return
    a("s_load_dwordx2 s[96:97], s[0:1], 72")
    a("s_waitcnt lgkmcnt(0)")
    a("s_and_b32 s97, s97, 0xffff")
    a("s_mov_b32 s98, 256")
    a("s_mov_b32 s99, 0x20000")

STV = 166
STAMPWG = 0
PREFETCH = False
ROTATE = True

def vr(b, n=1):
    return "v%d" % b if n == 1 else "v[%d:%d]" % (b, b + n - 1)


def sr(b, n=1):
    return "s%d" % b if n == 1 else "s[%d:%d]" % (b, b + n - 1)


def mfma(a, d, x, y, c=None):
    a("v_mfma_f32_16x16x32_bf16 %s, %s, %s, %s" % (vr(d, 4), vr(x, 4), vr(y, 4), vr(d, 4) if c is None else c))


def srd(a, d, base, nbytes):
    a("s_mov_b32 %s, %s" % (sr(d), sr(base)))
    a("s_and_b32 %s, %s, 0xffff" % (sr(d + 1), sr(base + 1)))
    a("s_mov_b32 %s, 0x%x" % (sr(d + 2), nbytes))
    a("s_mov_b32 %s, 0x20000" % sr(d + 3))


S_TOK = 2048
D = 640
A2_PITCH = 2176 * 2
A2_BYTES = S_TOK * A2_PITCH
EPS = 1e-5
LOG2E = 1.4426950408889634
GC1 = 2.0 * 0.7978845608028654 * LOG2E
GC2 = GC1 * 0.044715
QK_SCALE = (20 ** -0.5) * LOG2E

REGION = 16384
AREG = 32768
SLOT = 51200
NSLOT = 3
STAT = NSLOT * SLOT
CS = STAT + 144 * 16
K1_LDS = CS + 224 * 4
QP = 304
PK = 49152
PKP = 672
NKS = 20
NCH = 10
RBP = 68 * 1024
WP_OFF = 128 * RBP
WS_BYTES = WP_OFF + 68 * 40 * 1024


def gen_k1(a):
    kn = "k1_kernel"
    a.lines.append(".globl %s" % kn)
    a.lines.append(".p2align 8")
    a.lines.append(".type %s,@function" % kn)
    a.label(kn)
    sX, sWQ, sW1, sB1, sWS, sPW = 8, 12, 16, 20, 24, 56
    sRT, sCG, sW, sRG, sCH, sE = 40, 41, 42, 43, 44, 45
    sT0, sT1, sT2, sT3 = 46, 47, 48, 49
    a("s_cmp_ge_u32 s2, 256")
    a("s_cbranch_scc1 k1_end")
    a("s_load_dwordx4 s[28:31], s[0:1], 0")
    a("s_load_dwordx4 s[32:35], s[0:1], 32")
    a("s_load_dwordx2 s[36:37], s[0:1], 80")
    a("s_load_dwordx2 s[60:61], s[0:1], 16")
    a("s_load_dwordx2 s[62:63], s[0:1], 48")
    a("s_and_b32 s3, s2, 7")
    a("s_lshr_b32 s4, s2, 3")
    a("s_lshr_b32 s5, s3, 1")
    a("s_lshl_b32 s5, s5, 2")
    a("s_and_b32 s6, s4, 3")
    a("s_add_u32 %s, s5, s6" % sr(sRT))
    a("s_and_b32 s5, s3, 1")
    a("s_lshl_b32 s5, s5, 3")
    a("s_lshr_b32 s6, s4, 2")
    a("s_add_u32 %s, s5, s6" % sr(sCG))
    a("v_lshrrev_b32 v1, 6, v0")
    a("s_nop 0")
    a("v_readfirstlane_b32 %s, v1" % sr(sW))
    a("v_and_b32 v1, 63, v0")
    a("v_and_b32 v2, 15, v1")
    a("v_lshrrev_b32 v3, 4, v1")
    a("v_bfe_u32 v30, v1, 2, 2")
    a("v_and_b32 v31, 3, v1")
    a("v_and_b32 v32, 1, v3")
    a("v_lshl_or_b32 v32, v32, 2, v30")
    a("v_lshl_add_u32 v33, v3, 3, v30")
    a("v_lshlrev_b32 v33, 8, v33")
    a("v_and_b32 v34, 1, v31")
    a("v_lshl_add_u32 v33, v34, 3, v33")
    a("v_lshrrev_b32 v34, 1, v31")
    a("v_lshlrev_b32 v32, 1, v32")
    a("v_lshrrev_b32 v29, 1, v2")
    a("v_xor_b32 v29, v29, v3")
    a("v_lshlrev_b32 v29, 4, v29")
    a("v_lshl_add_u32 v29, v2, 7, v29")
    a("s_waitcnt lgkmcnt(0)")
    srd(a, sX, 28, S_TOK * D * 2)
    srd(a, sWQ, 30, 640 * 1920 * 2)
    srd(a, sW1, 32, 640 * 1536 * 2)
    srd(a, sB1, 34, 1536 * 2)
    srd(a, sWS, 36, WS_BYTES)
    stamp_init(a)
    stamp(a, 0, sW, 5)
    a.reset_counters()
    a("s_and_b32 %s, %s, 3" % (sr(sE), sr(sW)))
    vDV = 160
    sDS = 72
    DS = [64, 72, 80, 88, 28]
    a("s_mul_i32 s50, %s, 80" % sr(sCG))
    a("s_mul_i32 s51, %s, 192" % sr(sCG))
    a("s_lshl_b32 s52, %s, 7" % sr(sRT))
    a("s_sub_u32 s52, s52, 16")
    a("s_movk_i32 s53, 1280")
    a("s_and_b32 s54, s4, 3")
    a("s_mul_i32 s54, s54, 3")
    a("s_lshr_b32 s55, s4, 2")
    a("s_add_u32 s54, s54, s55")
    a("s_sub_u32 s55, s54, 10")
    a("s_cmp_ge_u32 s54, 10")
    a("s_cselect_b32 s54, s55, s54")
    if not ROTATE:
        a("s_mov_b32 s54, 0")

    def slot_A(i):
        d = DS[i]
        for k in range(4):
            a("s_mov_b32 %s, %s" % (sr(d + k), sr(sX + k)))
        a("s_lshl_b32 %s, s54, 7" % sr(d + 4))
        a("s_movk_i32 %s, 128" % sr(d + 5))
        a("s_movk_i32 %s, 1280" % sr(d + 7))
        a("s_lshl_b32 %s, %s, 10" % (sr(d + 6), sr(sT0)))
        a("s_add_u32 %s, %s, %d" % (sr(d + 6), sr(d + 6), AREG))
        a("s_and_b32 %s, %s, 1" % (sr(sT1), sr(sT0)))
        a("s_lshl_b32 %s, %s, 2" % (sr(sT1), sr(sT1)))
        a("v_add_u32 v35, %s, v3" % sr(sT1))
        a("v_and_b32 v36, 7, v1")
        a("v_xor_b32 v35, v35, v36")
        a("s_lshl_b32 %s, %s, 3" % (sr(sT1), sr(sT0)))
        a("s_add_u32 %s, %s, s52" % (sr(sT1), sr(sT1)))
        a("v_lshrrev_b32 v36, 3, v1")
        a("v_add_u32 v36, %s, v36" % sr(sT1))
        a("v_mul_lo_u32 v36, v36, s53")
        a("v_lshl_add_u32 %s, v35, 4, v36" % vr(vDV + i))

    def slot_B(i, mlp):
        d = DS[i]
        src = sW1 if mlp else sWQ
        for k in range(4):
            a("s_mov_b32 %s, %s" % (sr(d + k), sr(src + k)))
        a("s_mul_i32 %s, s54, %d" % (sr(d + 4), 64 * (3072 if mlp else 3840)))
        a("s_mov_b32 %s, %d" % (sr(d + 5), 64 * (3072 if mlp else 3840)))
        a("s_mov_b32 %s, %d" % (sr(d + 7), 640 * (3072 if mlp else 3840)))
        a("s_sub_u32 %s, %s, %d" % (sr(sT0), sr(sT0), 34 if mlp else 18))
        a("s_lshl_b32 %s, %s, 10" % (sr(d + 6), sr(sT0)))
        if mlp:
            a("s_add_u32 %s, %s, %d" % (sr(d + 6), sr(d + 6), REGION))
        a("s_and_b32 %s, %s, 2" % (sr(sT1), sr(sT0)))
        a("s_lshl_b32 %s, %s, 2" % (sr(sT1), sr(sT1)))
        a("v_lshl_or_b32 v35, v3, 1, %s" % sr(sT1))
        a("v_xor_b32 v35, v35, v2")
        a("s_lshl_b32 %s, %s, 2" % (sr(sT1), sr(sT0)))
        a("v_add_u32 v41, %s, v3" % sr(sT1))
        if mlp:
            a("v_min_u32 v40, 11, v35")
            a("v_lshlrev_b32 v40, 4, v40")
            a("v_mul_u32_u24 v42, 3072, v41")
            a("v_add3_u32 %s, v42, v40, s51" % vr(vDV + i))
        else:
            a("v_min_u32 v36, 14, v35")
            a("v_mul_u32_u24 v37, 52, v36")
            a("v_lshrrev_b32 v37, 8, v37")
            a("v_mul_u32_u24 v38, 5, v37")
            a("v_sub_u32 v38, v36, v38")
            a("v_add_u32 v39, 1, v37")
            a("v_cmp_eq_u32 vcc, 2, v37")
            a("s_nop 1")
            a("v_cndmask_b32 v39, v39, 0, vcc")
            a("v_mul_u32_u24 v39, 1280, v39")
            a("v_lshl_add_u32 v39, v38, 4, v39")
            a("v_mul_u32_u24 v42, 3840, v41")
            a("v_add3_u32 %s, v42, v39, s50" % vr(vDV + i))

    def dma_one(i, c):
        d = DS[i]
        a("s_add_u32 m0, %s, 0x%x" % (sr(d + 6), (c % NSLOT) * SLOT))
        a("s_nop 0")
        a("buffer_load_dwordx4 %s, %s, %s offen lds" % (vr(vDV + i), sr(d, 4), sr(d + 4)))
        a("s_add_u32 %s, %s, %s" % (sr(d + 4), sr(d + 4), sr(d + 5)))
        a("s_cmp_eq_u32 %s, %s" % (sr(d + 4), sr(d + 7)))
        a("s_cselect_b32 %s, 0, %s" % (sr(d + 4), sr(d + 4)))

    def dma_chunk(c, opt=True):
        if opt:
            a.nlab += 1
            a("s_cmp_ge_u32 %s, 2" % sr(sW))
            a("s_cbranch_scc1 k1_dskip%d" % a.nlab)
            dma_one(4, c)
            a.label("k1_dskip%d" % a.nlab)
        for i in range(4):
            dma_one(i, c)
            a.vm_issue(("D", c))

    a("s_mov_b32 %s, %s" % (sr(sT0), sr(sW)))
    slot_A(0)
    dma_one(0, 0)
    a.vm_issue(("D", 0))
    a("s_add_u32 %s, %s, 12" % (sr(sT0), sr(sW)))
    a("s_cmp_ge_u32 %s, 6" % sr(sW))
    a("s_cbranch_scc1 k1_s1b")
    slot_A(1)
    a("s_branch k1_s1e")
    a.label("k1_s1b")
    slot_B(1, False)
    a.label("k1_s1e")
    dma_one(1, 0)
    a.vm_issue(("D", 0))
    a("s_add_u32 %s, %s, 24" % (sr(sT0), sr(sW)))
    a("s_cmp_ge_u32 %s, 10" % sr(sW))
    a("s_cbranch_scc1 k1_s2b")
    slot_B(2, False)
    a("s_branch k1_s2e")
    a.label("k1_s2b")
    slot_B(2, True)
    a.label("k1_s2e")
    dma_one(2, 0)
    a.vm_issue(("D", 0))
    a("s_cmp_ge_u32 %s, 2" % sr(sW))
    a("s_cbranch_scc1 k1_s4e")
    a("s_add_u32 %s, %s, 48" % (sr(sT0), sr(sW)))
    slot_B(4, True)
    dma_one(4, 0)
    a.label("k1_s4e")
    a("s_add_u32 %s, %s, 36" % (sr(sT0), sr(sW)))
    slot_B(3, True)
    dma_one(3, 0)
    a.vm_issue(("D", 0))
    dma_chunk(1)
    VM0 = list(a.vm)
    a("s_cmp_ge_u32 %s, 8" % sr(sW))
    a("s_cbranch_scc1 k1_extra")

    def tr_addr(vd, sblk2, region):
        a("v_add_u32 v35, %s, v34" % sr(sblk2))
        a("v_xor_b32 v35, v35, v32")
        a("v_lshl_add_u32 %s, v35, 4, v33" % vr(vd))
        if region:
            a("v_add_u32 %s, 0x%x, %s" % (vr(vd), region * REGION, vr(vd)))

    def tr_reads(buf, addr_lo, addr_hi, t, tag):
        slot = (t // 2) % NSLOT
        base = addr_lo if slot < 2 else addr_hi
        off = (slot & 1) * SLOT + (t & 1) * 8192
        a("ds_read_b64_tr_b16 %s, %s offset:%d" % (vr(buf, 2), vr(base), off))
        a.lg_issue(tag)
        a("ds_read_b64_tr_b16 %s, %s offset:%d" % (vr(buf + 2, 2), vr(base), off + 1024))
        a.lg_issue(tag)

    def a_read(buf, addr4, t, tag):
        slot = (t // 2) % NSLOT
        base = addr4 + (0 if slot < 2 else 2) + (t & 1)
        a("ds_read_b128 %s, %s offset:%d" % (vr(buf, 4), vr(base), (slot & 1) * SLOT))
        a.lg_issue(tag)

    def a_addr(addr4, srow128):
        a("v_add_u32 %s, %s, v29" % (vr(addr4), sr(srow128)))
        a("v_xor_b32 %s, 64, %s" % (vr(addr4 + 1), vr(addr4)))
        a("v_add_u32 %s, 0x%x, %s" % (vr(addr4 + 2), 2 * SLOT, vr(addr4)))
        a("v_add_u32 %s, 0x%x, %s" % (vr(addr4 + 3), 2 * SLOT, vr(addr4 + 1)))

    def stats_compute(vsum, vsq4, out4, tmp):
        t0, t1, t2 = tmp, tmp + 1, tmp + 2
        a("v_and_b32 %s, 3, v2" % vr(t0))
        a("v_mov_b32 %s, %s" % (vr(t1), vr(vsq4)))
        for i in (1, 2, 3):
            a("v_cmp_eq_u32 vcc, %d, %s" % (i, vr(t0)))
            a("s_nop 1")
            a("v_cndmask_b32 %s, %s, %s, vcc" % (vr(t1), vr(t1), vr(vsq4 + i)))
        a("v_lshrrev_b32 %s, 2, v2" % vr(t0))
        a("v_lshl_add_u32 %s, %s, 4, v2" % (vr(t0), vr(t0)))
        a("v_lshlrev_b32 %s, 2, %s" % (vr(t0), vr(t0)))
        a("ds_bpermute_b32 %s, %s, %s" % (vr(t2), vr(t0), vr(t1)))
        a("s_waitcnt lgkmcnt(0)")
        a.lg = []
        a("v_mul_f32 %s, 0x%x, %s" % (vr(t0), f32bits(1.0 / 640), vr(vsum)))
        a("v_mul_f32 %s, 0x%x, %s" % (vr(t2), f32bits(1.0 / 640), vr(t2)))
        a("v_fma_f32 %s, -%s, %s, %s" % (vr(t2), vr(t0), vr(t0), vr(t2)))
        a("v_max_f32 %s, 0, %s" % (vr(t2), vr(t2)))
        a("v_add_f32 %s, 0x%x, %s" % (vr(t1), f32bits(EPS), vr(t2)))
        a("v_rsq_f32 %s, %s" % (vr(out4), vr(t1)))
        a("s_nop 0")
        a("v_mul_f32 %s, %s, %s" % (vr(t1), vr(out4), vr(out4)))
        a("v_mul_f32 %s, %s, %s" % (vr(t1), vr(t1), vr(t2)))
        a("v_add_f32 %s, 0x%x, %s" % (vr(t1), f32bits(EPS), vr(t1)))
        a("v_rsq_f32 %s, %s" % (vr(t1), vr(t1)))
        a("v_mul_f32 %s, %s, %s" % (vr(out4 + 1), vr(out4), vr(t0)))
        a("v_mul_f32 %s, %s, %s" % (vr(out4 + 2), vr(out4), vr(t1)))
        a("v_mul_f32 %s, %s, %s" % (vr(out4 + 3), vr(out4 + 2), vr(t0)))

    def qkv_pos(vd, sblk4, vrow, tmp):
        a("v_add_u32 %s, %s, v3" % (vr(tmp), sr(sblk4)))
        a("v_mul_u32_u24 %s, 52, %s" % (vr(tmp + 1), vr(tmp)))
        a("v_lshrrev_b32 %s, 8, %s" % (vr(tmp + 1), vr(tmp + 1)))
        a("v_add_u32 %s, %s, %s" % (vr(tmp), vr(tmp), vr(tmp + 1)))
        a("v_mul_u32_u24 %s, %d, %s" % (vr(vd), QP, vr(vrow)))
        a("v_lshl_add_u32 %s, %s, 3, %s" % (vr(vd), vr(tmp), vr(vd)))

    a.vm = list(VM0)
    a.lg = []
    vTL, vTH = 6, 13
    vB1 = 20
    vONE = 36
    vAA0, vAA1 = 40, 44
    AB = 48
    BB = AB + 16
    NB = 5
    ACC = BB + NB * 4
    ST = ACC + 56
    a("s_and_b32 %s, %s, 3" % (sr(sRG), sr(sW)))
    a("s_lshr_b32 %s, %s, 2" % (sr(sCH), sr(sW)))
    if PREFETCH:
        a("s_and_b32 %s, s4, 3" % sr(sT0))
        a("s_mul_i32 %s, %s, 160" % (sr(sT0), sr(sT0)))
        a("s_mul_i32 %s, %s, 20" % (sr(sT1), sr(sW)))
        a("s_add_u32 %s, %s, %s" % (sr(sT0), sr(sT0), sr(sT1)))
        a("s_mul_i32 %s, %s, 80" % (sr(sT1), sr(sCG)))
        a("s_movk_i32 %s, 10923" % sr(sT2))
        for i in range(2):
            a("v_add_u32 v36, %d, v1" % (64 * i))
            a("v_min_u32 v36, 119, v36")
            a("v_mul_lo_u32 v37, v36, %s" % sr(sT2))
            a("v_lshrrev_b32 v37, 16, v37")
            a("v_mul_u32_u24 v38, 6, v37")
            a("v_sub_u32 v38, v36, v38")
            a("v_lshrrev_b32 v39, 1, v38")
            a("v_mul_u32_u24 v39, 1280, v39")
            a("v_and_b32 v38, 1, v38")
            a("v_mul_u32_u24 v38, 76, v38")
            a("v_add_u32 v37, %s, v37" % sr(sT0))
            a("v_mul_u32_u24 v37, 3840, v37")
            a("v_add3_u32 v37, v37, v38, v39")
            a("v_add_u32 v37, %s, v37" % sr(sT1))
            a("buffer_load_dword %s, v37, %s, 0 offen" % (vr(26 + i), sr(sWQ, 4)))
            a.vm_issue("pf")
        a("v_min_u32 v36, 39, v1")
        a("v_lshrrev_b32 v37, 1, v36")
        a("v_add_u32 v37, %s, v37" % sr(sT0))
        a("v_mul_u32_u24 v37, 3072, v37")
        a("v_and_b32 v38, 1, v36")
        a("v_mul_u32_u24 v38, 188, v38")
        a("s_mul_i32 %s, %s, 192" % (sr(sT1), sr(sCG)))
        a("v_add3_u32 v37, v37, v38, %s" % sr(sT1))
        a("buffer_load_dword v28, v37, %s, 0 offen" % sr(sW1, 4))
        a.vm_issue("pf")
        a("s_lshr_b32 %s, s4, 2" % sr(sT0))
        a("s_mul_i32 %s, %s, 180" % (sr(sT0), sr(sT0)))
        a("s_mul_i32 %s, %s, 23" % (sr(sT1), sr(sW)))
        a("s_add_u32 %s, %s, %s" % (sr(sT0), sr(sT0), sr(sT1)))
        a("s_mul_i32 %s, %s, 1280" % (sr(sT1), sr(sRT)))
        a("s_sub_u32 %s, %s, 160" % (sr(sT1), sr(sT1)))
        a("s_add_u32 %s, %s, %s" % (sr(sT0), sr(sT0), sr(sT1)))
        a("v_min_u32 v36, 22, v1")
        a("v_add_u32 v36, %s, v36" % sr(sT0))
        a("v_lshlrev_b32 v36, 7, v36")
        a("buffer_load_dword v5, v36, %s, 0 offen" % sr(sX, 4))
        a.vm_issue("pf")
    a("s_mul_i32 %s, %s, 192" % (sr(sT0), sr(sCG)))
    a("s_mul_i32 %s, %s, 96" % (sr(sT1), sr(sCH)))
    a("s_add_u32 %s, %s, %s" % (sr(sT0), sr(sT0), sr(sT1)))
    a("v_lshlrev_b32 v35, 3, v3")
    a("v_add_u32 v35, %s, v35" % sr(sT0))
    for j in range(3):
        a("buffer_load_dwordx2 %s, v35, %s, 0 offen offset:%d" % (vr(vB1 + 2 * j, 2), sr(sB1, 4), 32 * j))
        a.vm_issue("b1")
    a("s_lshl_b32 %s, %s, 12" % (sr(sT0), sr(sRG)))
    a("s_lshl_b32 %s, %s, 11" % (sr(sT1), sr(sCH)))
    a("s_add_u32 %s, %s, %s" % (sr(sT2), sr(sT0), sr(sT1)))
    a("s_add_u32 %s, %s, %d" % (sr(sT2), sr(sT2), AREG + 2048))
    a("s_sub_u32 %s, %s, %s" % (sr(sT3), sr(sT0), sr(sT1)))
    a("s_add_u32 %s, %s, %d" % (sr(sT3), sr(sT3), AREG + 4096))
    a_addr(vAA0, sT2)
    a_addr(vAA1, sT3)
    for j in range(7):
        if j < 4:
            a("s_lshl_b32 %s, %s, 3" % (sr(sT0), sr(sCH)))
            a("s_add_u32 %s, %s, %d" % (sr(sT0), sr(sT0), 2 * j))
            tr_addr(vTL + j, sT0, 0)
        else:
            a("s_mul_i32 %s, %s, 6" % (sr(sT0), sr(sCH)))
            a("s_add_u32 %s, %s, %d" % (sr(sT0), sr(sT0), 2 * (j - 4)))
            tr_addr(vTL + j, sT0, 1)
        a("v_add_u32 %s, 0x%x, %s" % (vr(vTH + j), 2 * SLOT, vr(vTL + j)))
    for i in range(4):
        a("v_mov_b32 %s, 0x3f803f80" % vr(vONE + i))
    for i in range(64):
        a("v_mov_b32 %s, 0" % vr(ACC + i))
    a.wait(vm_tags=[("D", 0)])
    a("s_barrier")
    stamp(a, 1, sW, 5)
    dma_chunk(2)
    PF = 4
    NFR = NKS * 7
    a_read(AB, vAA0, 0, ("A", 0))
    a_read(AB + 4, vAA1, 0, ("A", 0))
    for n in range(PF):
        tr_reads(BB + (n % NB) * 4, vTL + n % 7, vTH + n % 7, n // 7, ("B", n))
    for t in range(NKS):
        a.comment("k-step %d" % t)
        fstamp(a, t, sW)
        ab = AB + (t % 2) * 8
        for j in range(7):
            n = 7 * t + j
            m = n + PF
            if j == 2 and t + 1 < NKS:
                nb = AB + ((t + 1) % 2) * 8
                a_read(nb, vAA0, t + 1, ("A", t + 1))
                a_read(nb + 4, vAA1, t + 1, ("A", t + 1))
            if m < NFR:
                tr_reads(BB + (m % NB) * 4, vTL + m % 7, vTH + m % 7, m // 7, ("B", m))
            a.wait(lg_tags=[("B", n), ("A", t)])
            bb = BB + (n % NB) * 4
            mfma(a, ACC + j * 4, bb, ab)
            mfma(a, ACC + 28 + j * 4, bb, ab + 4)
            if j == 3:
                mfma(a, ST + 4, ab, ab)
            if j == 5:
                mfma(a, ST, vONE, ab)
        if t < 18:
            c = t // 2
            if t % 2 == 0:
                a.wait(vm_tags=[("D", c + 1)])
                a("s_barrier")
            else:
                a("s_barrier")
                if c + 3 < NCH:
                    dma_chunk(c + 3)
    fstamp(a, 20, sW)
    a("s_nop 7")
    a("s_nop 3")
    stamp(a, 2, sW, 5)
    TMP = 36
    vST0 = 40
    vST1 = 44
    stats_compute(ST, ST + 4, vST0, TMP)
    a("s_lshl_b32 %s, %s, 5" % (sr(sT0), sr(sRG)))
    a("s_lshl_b32 %s, %s, 4" % (sr(sT1), sr(sCH)))
    a("s_add_u32 %s, %s, %s" % (sr(sT2), sr(sT0), sr(sT1)))
    a("s_add_u32 %s, %s, 16" % (sr(sT2), sr(sT2)))
    a("s_sub_u32 %s, %s, %s" % (sr(sT3), sr(sT0), sr(sT1)))
    a("s_add_u32 %s, %s, 32" % (sr(sT3), sr(sT3)))
    vRL0, vRL1 = 48, 49
    a("v_add_u32 v48, %s, v2" % sr(sT2))
    a("v_add_u32 v49, %s, v2" % sr(sT3))
    a("v_lshlrev_b32 v50, 4, v48")
    a("v_lshlrev_b32 v51, 4, v49")
    a("v_add_u32 v50, 0x%x, v50" % STAT)
    a("v_add_u32 v51, 0x%x, v51" % STAT)
    a("ds_write_b128 v50, %s" % vr(vST0, 4))
    a("s_waitcnt lgkmcnt(0)")
    a("s_barrier")
    a("ds_read_b128 %s, v51" % vr(vST1, 4))
    CSR = 52
    a("s_lshl_b32 %s, %s, 8" % (sr(sT0), sr(sCH)))
    a("s_add_u32 %s, %s, 0x%x" % (sr(sT0), sr(sT0), CS))
    a("v_lshl_add_u32 v36, v3, 4, %s" % sr(sT0))
    for j in range(4):
        a("ds_read_b128 %s, v36 offset:%d" % (vr(CSR + 4 * j, 4), 64 * j))
    a("s_mul_i32 %s, %s, 192" % (sr(sT0), sr(sCH)))
    a("s_add_u32 %s, %s, 0x%x" % (sr(sT0), sr(sT0), CS + 512))
    a("v_lshl_add_u32 v37, v3, 4, %s" % sr(sT0))
    for j in range(3):
        a("ds_read_b128 %s, v37 offset:%d" % (vr(CSR + 16 + 4 * j, 4), 64 * j))
    a("s_waitcnt lgkmcnt(0)")
    for j in range(4):
        a("s_lshl_b32 %s, %s, 4" % (sr(sT0), sr(sCH)))
        a("s_add_u32 %s, %s, %d" % (sr(sT0), sr(sT0), 4 * j))
        for b in range(2):
            st = vST0 if b == 0 else vST1
            acc = ACC + 28 * b + 4 * j
            for i in range(4):
                a("v_mul_f32 v80, %s, %s" % (vr(st + 1), vr(CSR + 4 * j + i)))
                a("v_fma_f32 %s, %s, %s, -v80" % (vr(acc + i), vr(acc + i), vr(st)))
            a("v_cvt_pk_bf16_f32 %s, %s, %s" % (vr(acc), vr(acc), vr(acc + 1)))
            a("v_cvt_pk_bf16_f32 %s, %s, %s" % (vr(acc + 1), vr(acc + 2), vr(acc + 3)))
            qkv_pos(38, sT0, vRL0 if b == 0 else vRL1, 36)
            a("ds_write_b64 v38, %s" % vr(acc, 2))
    a("s_waitcnt lgkmcnt(0)")
    a("s_barrier")
    stamp(a, 3, sW, 5)
    a.wait(vm_tags=["b1"])
    a("s_mul_i32 %s, %s, 6" % (sr(sT0), sr(sCG)))
    a("s_mul_i32 %s, %s, 3" % (sr(sT1), sr(sCH)))
    a("s_add_u32 %s, %s, %s" % (sr(sT0), sr(sT0), sr(sT1)))
    a("s_add_u32 %s, %s, 40" % (sr(sT0), sr(sT0)))
    a("s_lshl_b32 %s, %s, 9" % (sr(sT0), sr(sT0)))
    a("s_lshl_b32 %s, %s, 3" % (sr(sT1), sr(sRT)))
    a("s_lshl_b32 %s, %s, 1" % (sr(sT2), sr(sRG)))
    a("s_add_u32 %s, %s, %s" % (sr(sT1), sr(sT1), sr(sT2)))
    a("s_add_u32 %s, %s, %s" % (sr(sT2), sr(sT1), sr(sCH)))
    a("s_sub_u32 %s, %s, %s" % (sr(sT3), sr(sT1), sr(sCH)))
    a("s_add_u32 %s, %s, 1" % (sr(sT3), sr(sT3)))
    a("s_mul_i32 %s, %s, %d" % (sr(sT2), sr(sT2), RBP))
    a("s_mul_i32 %s, %s, %d" % (sr(sT3), sr(sT3), RBP))
    a("s_add_u32 %s, %s, %s" % (sr(sT2), sr(sT2), sr(sT0)))
    a("s_add_u32 %s, %s, %s" % (sr(sT3), sr(sT3), sr(sT0)))
    a("v_lshrrev_b32 v36, 1, v3")
    a("v_lshlrev_b32 v36, 8, v36")
    a("v_lshl_add_u32 v36, v2, 4, v36")
    a("v_and_b32 v37, 1, v3")
    a("v_lshl_add_u32 v36, v37, 3, v36")
    a("v_add_u32 v38, %s, v36" % sr(sT2))
    a("v_add_u32 v39, %s, v36" % sr(sT3))
    a("s_mov_b32 %s, 0x%x" % (sr(sT2), f32bits(GC1)))
    a("s_mov_b32 %s, 0x%x" % (sr(sT3), f32bits(GC2)))
    a("v_mov_b32 v37, %s" % sr(sT2))
    for j in range(3):
        a("v_lshlrev_b32 v80, 16, %s" % vr(vB1 + 2 * j))
        a("v_and_b32 v81, 0xffff0000, %s" % vr(vB1 + 2 * j))
        a("v_lshlrev_b32 v82, 16, %s" % vr(vB1 + 2 * j + 1))
        a("v_and_b32 v83, 0xffff0000, %s" % vr(vB1 + 2 * j + 1))
        for b in range(2):
            st = vST0 if b == 0 else vST1
            acc = ACC + 28 * b + 4 * (4 + j)
            T4 = 4
            for i in range(4):
                a("v_fma_f32 %s, -%s, %s, %s" % (vr(T4 + i), vr(st + 3), vr(CSR + 16 + 4 * j + i), vr(80 + i)))
            for i in range(4):
                a("v_fma_f32 %s, %s, %s, %s" % (vr(acc + i), vr(acc + i), vr(st + 2), vr(T4 + i)))
            for i in range(4):
                a("v_mul_f32 %s, %s, %s" % (vr(T4 + i), vr(acc + i), vr(acc + i)))
            for i in range(4):
                a("v_fma_f32 %s, %s, %s, v37" % (vr(T4 + i), vr(T4 + i), sr(sT3)))
            for i in range(4):
                a("v_mul_f32_e64 %s, -%s, %s" % (vr(T4 + i), vr(acc + i), vr(T4 + i)))
            for i in range(4):
                a("v_exp_f32 %s, %s" % (vr(T4 + i), vr(T4 + i)))
            for i in range(4):
                a("v_add_f32 %s, 1.0, %s" % (vr(T4 + i), vr(T4 + i)))
            for i in range(4):
                a("v_rcp_f32 %s, %s" % (vr(T4 + i), vr(T4 + i)))
            for i in range(4):
                a("v_mul_f32 %s, %s, %s" % (vr(acc + i), vr(acc + i), vr(T4 + i)))
            a("v_cvt_pk_bf16_f32 %s, %s, %s" % (vr(acc), vr(acc), vr(acc + 1)))
            a("v_cvt_pk_bf16_f32 %s, %s, %s" % (vr(acc + 1), vr(acc + 2), vr(acc + 3)))
            a("buffer_store_dwordx2 %s, %s, %s, 0 offen offset:%d" % (vr(acc, 2), vr(38 + b), sr(sWS, 4), 512 * j))
    a("v_and_b32 v4, 1, v0")
    a("v_bfe_u32 v5, v0, 1, 7")
    a("v_lshrrev_b32 v6, 8, v0")
    a("v_lshlrev_b32 v7, 3, v4")
    a("v_sub_u32 v7, v5, v7")
    a("v_add_u32 v7, 10, v7")
    a("v_mul_u32_u24 v7, %d, v7" % QP)
    a("v_mul_u32_u24 v8, 48, v6")
    a("v_add_u32 v7, v7, v8")
    a("v_add_u32 v9, 16, v5")
    a("v_mul_u32_u24 v9, %d, v9" % QP)
    a("v_add_u32 v9, v9, v8")
    Q, KK, VV = 20, 32, 80
    a("ds_read_b128 %s, v9 offset:192" % vr(Q, 4))
    a("ds_read_b128 %s, v9 offset:208" % vr(Q + 4, 4))
    a("ds_read_b64 %s, v9 offset:224" % vr(Q + 8, 2))
    for ww in range(4):
        off = (6 - 2 * ww) * QP
        a("ds_read_b128 %s, v7 offset:%d" % (vr(KK + 12 * ww, 4), off))
        a("ds_read_b128 %s, v7 offset:%d" % (vr(KK + 12 * ww + 4, 4), off + 16))
        a("ds_read_b64 %s, v7 offset:%d" % (vr(KK + 12 * ww + 8, 2), off + 32))
    a("s_waitcnt lgkmcnt(0)")
    for ww in range(4):
        off = (6 - 2 * ww) * QP + 96
        a("ds_read_b128 %s, v7 offset:%d" % (vr(VV + 12 * ww, 4), off))
        a("ds_read_b128 %s, v7 offset:%d" % (vr(VV + 12 * ww + 4, 4), off + 16))
        a("ds_read_b64 %s, v7 offset:%d" % (vr(VV + 12 * ww + 8, 2), off + 32))
    LG = 10
    for ww in range(4):
        a("v_mov_b32 %s, 0" % vr(LG + ww))
    for d in range(10):
        for ww in range(4):
            a("v_dot2_f32_bf16 %s, %s, %s, %s" % (vr(LG + ww), vr(Q + d), vr(KK + 12 * ww + d), vr(LG + ww)))
    a("s_lshl_b32 %s, %s, 7" % (sr(sT0), sr(sRT)))
    a("v_add_u32 v14, %s, v5" % sr(sT0))
    a("v_lshlrev_b32 v15, 3, v4")
    a("v_sub_u32 v14, v14, v15")
    a("v_mov_b32 v15, 0x%x" % f32bits(-1e9))
    a("v_mov_b32 v16, 0x%x" % f32bits(QK_SCALE))
    for ww in range(4):
        a("v_mul_f32 %s, %s, v16" % (vr(LG + ww), vr(LG + ww)))
        a("v_cmp_le_i32 vcc, %d, v14" % (2 * ww))
        a("s_nop 1")
        a("v_cndmask_b32 %s, v15, %s, vcc" % (vr(LG + ww), vr(LG + ww)))
    a("v_max_f32 v16, v10, v11")
    a("v_max3_f32 v16, v16, v12, v13")
    a("s_nop 1")
    a("v_max_f32_dpp v17, v16, v16 quad_perm:[1,0,3,2] row_mask:0xf bank_mask:0xf")
    for ww in range(4):
        a("v_sub_f32 %s, %s, v17" % (vr(LG + ww), vr(LG + ww)))
        a("v_exp_f32 %s, %s" % (vr(LG + ww), vr(LG + ww)))
    a("s_nop 0")
    a("v_add_f32 v16, v10, v11")
    a("v_add_f32 v18, v12, v13")
    a("v_add_f32 v16, v16, v18")
    a("s_nop 1")
    a("v_add_f32_dpp v17, v16, v16 quad_perm:[1,0,3,2] row_mask:0xf bank_mask:0xf")
    a("v_rcp_f32 v17, v17")
    a("s_nop 0")
    PL, PH = 20, 24
    for ww in range(4):
        a("v_mul_f32 %s, %s, v17" % (vr(LG + ww), vr(LG + ww)))
        a("v_cvt_pk_bf16_f32 %s, %s, 0" % (vr(PL + ww), vr(LG + ww)))
        a("v_lshlrev_b32 %s, 16, %s" % (vr(PH + ww), vr(PL + ww)))
    O = 32
    a("s_waitcnt lgkmcnt(0)")
    for d in range(10):
        a("v_dot2_f32_bf16 %s, %s, %s, 0" % (vr(O + 2 * d), vr(VV + d), vr(PL)))
        a("v_dot2_f32_bf16 %s, %s, %s, 0" % (vr(O + 2 * d + 1), vr(VV + d), vr(PH)))
    for ww in range(1, 4):
        for d in range(10):
            a("v_dot2_f32_bf16 %s, %s, %s, %s" % (vr(O + 2 * d), vr(VV + 12 * ww + d), vr(PL + ww), vr(O + 2 * d)))
            a("v_dot2_f32_bf16 %s, %s, %s, %s" % (vr(O + 2 * d + 1), vr(VV + 12 * ww + d), vr(PH + ww), vr(O + 2 * d + 1)))
    a("v_cmp_eq_u32 vcc, 1, v4")
    a("s_nop 1")
    R = 56
    for d in range(10):
        a("v_cndmask_b32 %s, %s, %s, vcc" % (vr(R + d), vr(O + d), vr(O + 10 + d)))
        a("v_cndmask_b32 %s, %s, %s, vcc" % (vr(R + 10 + d), vr(O + 10 + d), vr(O + d)))
    a("s_nop 1")
    for d in range(10):
        a("v_add_f32_dpp %s, %s, %s quad_perm:[1,0,3,2] row_mask:0xf bank_mask:0xf" % (vr(R + d), vr(R + 10 + d), vr(R + d)))
    for d in range(5):
        a("v_cvt_pk_bf16_f32 %s, %s, %s" % (vr(R + 20 + d), vr(R + 2 * d), vr(R + 2 * d + 1)))
    a("v_lshrrev_b32 v14, 4, v5")
    a("s_lshl_b32 %s, %s, 3" % (sr(sT1), sr(sRT)))
    a("v_add_u32 v14, %s, v14" % sr(sT1))
    a("s_mov_b32 %s, %d" % (sr(sT2), RBP))
    a("v_mul_lo_u32 v14, v14, %s" % sr(sT2))
    a("s_mul_i32 %s, %s, 1280" % (sr(sT1), sr(sCG)))
    a("v_and_b32 v15, 15, v5")
    a("v_lshl_add_u32 v14, v15, 4, v14")
    a("v_add_u32 v14, %s, v14" % sr(sT1))
    a("v_lshl_add_u32 v15, v6, 1, v4")
    a("v_lshl_add_u32 v16, v15, 8, v14")
    a("v_lshl_add_u32 v17, v15, 2, v14")
    a("buffer_store_dwordx4 %s, v16, %s, 0 offen" % (vr(R + 20, 4), sr(sWS, 4)))
    a("buffer_store_dword %s, v17, %s, 0 offen offset:1024" % (vr(R + 24), sr(sWS, 4)))
    stamp(a, 4, sW, 5)
    a("s_endpgm")

    a.label("k1_extra")
    a.vm = list(VM0)
    a.lg = []
    vEA = 40
    EAB = 44
    EBB = EAB + 8
    EACC = EBB + NB * 4
    EST = EACC + 16
    EONES = 96
    PKR = 100
    vPB = [10, 11, 12, 17, 18]

    def pack_rowgran(d):
        a("v_add_u32 v35, %d, v1" % (64 * d))
        a("v_mul_lo_u32 v36, v35, %s" % sr(sT2))
        a("v_lshrrev_b32 v36, 16, v36")
        a("v_mul_u32_u24 v37, 40, v36")
        a("v_sub_u32 v37, v35, v37")
        a("v_add_u32 v36, %s, v36" % sr(sT3))

    def pack_loads(u):
        sPT = 54
        a("s_lshr_b32 %s, s2, 1" % sr(sPT))
        a("s_mov_b32 %s, 0x%x" % (sr(sT0), 640 * 640 * 2))
        a("s_cmp_lt_u32 %s, 20" % sr(sPT))
        a("s_cselect_b64 %s, s[60:61], s[62:63]" % sr(sPW, 2))
        a("s_cselect_b32 %s, %s, 0x%x" % (sr(sPW + 2), sr(sT0), 1536 * 640 * 2))
        a("s_cselect_b32 %s, 0, 640" % sr(sT1))
        a("s_cselect_b64 s[36:37], -1, 0")
        a("s_and_b32 %s, %s, 0xffff" % (sr(sPW + 1), sr(sPW + 1)))
        a("s_mov_b32 %s, 0x20000" % sr(sPW + 3))
        a("s_lshl_b32 %s, %s, 5" % (sr(sT0), sr(sPT)))
        a("s_sub_u32 %s, %s, %s" % (sr(sT0), sr(sT0), sr(sT1)))
        if u == 0:
            a("s_movk_i32 %s, 1639" % sr(sT2))
            a("s_lshl_b32 %s, %s, 3" % (sr(sT3), sr(sE)))
            a("s_and_b32 %s, s2, 1" % sr(sT1))
            a("s_mul_i32 %s, %s, 640" % (sr(sT1), sr(sT1)))
        else:
            a("s_mul_i32 %s, %s, 1280" % (sr(sT0), sr(sT0)))
        for d in range(5):
            if u == 0:
                pack_rowgran(d)
                a("v_lshlrev_b32 v37, 4, v37")
                a("v_add_u32 v5, %s, v37" % sr(sT1))
                a("v_mul_u32_u24 v37, 1280, v36")
                a("v_add_u32 %s, v37, v5" % vr(vPB[d]))
                a("v_add_u32 v36, %s, v36" % sr(sT0))
                a("v_mul_lo_u32 v38, v36, %s" % sr(sT2))
                a("v_lshrrev_b32 v38, 16, v38")
                a("v_mul_u32_u24 v39, 40, v38")
                a("v_sub_u32 v35, v36, v39")
                a("v_lshrrev_b32 v37, 3, v35")
                a("v_mul_u32_u24 v37, 10, v37")
                a("v_and_b32 v38, 7, v35")
                a("v_add3_u32 v37, v37, v38, v39")
                a("v_subrev_u32 v38, 32, v35")
                a("v_lshrrev_b32 v38, 1, v38")
                a("v_mul_u32_u24 v38, 10, v38")
                a("v_add3_u32 v38, v38, v39, 8")
                a("v_and_b32 v39, 1, v35")
                a("v_add_u32 v38, v38, v39")
                a("v_cmp_gt_u32 vcc, 32, v35")
                a("s_nop 1")
                a("v_cndmask_b32 v37, v38, v37, vcc")
                a("v_cndmask_b32 v36, v36, v37, s[36:37]")
                a("v_mul_u32_u24 v36, 1280, v36")
                a("v_add_u32 v36, v36, v5")
                a("buffer_load_dwordx4 %s, v36, %s, 0 offen" % (vr(PKR + 4 * d, 4), sr(sPW, 4)))
            else:
                a("buffer_load_dwordx4 %s, %s, %s, %s offen" % (vr(PKR + 20 * u + 4 * d, 4), vr(vPB[d]), sr(sPW, 4), sr(sT0)))
            a.vm_issue("P")

    a("s_movk_i32 %s, 0x%x" % (sr(sT0), AREG) if AREG < 32768 else "s_mov_b32 %s, 0x%x" % (sr(sT0), AREG))
    a_addr(vEA, sT0)
    for i in range(4):
        a("s_lshl_b32 %s, %s, 2" % (sr(sT0), sr(sE)))
        a("s_add_u32 %s, %s, %d" % (sr(sT0), sr(sT0), i))
        a("s_cmp_lt_u32 %s, 14" % sr(sT0))
        a("s_cselect_b32 %s, %s, 0" % (sr(sT0), sr(sT0)))
        a("s_and_b32 %s, %s, 7" % (sr(sT1), sr(sT0)))
        a("s_lshl_b32 %s, %s, 1" % (sr(sT1), sr(sT1)))
        a("s_lshr_b32 %s, %s, 3" % (sr(sT0), sr(sT0)))
        a("s_lshl_b32 %s, %s, 14" % (sr(sT0), sr(sT0)))
        tr_addr(vTL + i, sT1, 0)
        a("v_add_u32 %s, %s, %s" % (vr(vTL + i), sr(sT0), vr(vTL + i)))
        a("v_add_u32 %s, 0x%x, %s" % (vr(vTH + i), 2 * SLOT, vr(vTL + i)))
    for i in range(4):
        a("v_mov_b32 %s, 0x3f803f80" % vr(EONES + i))
    for i in range(24):
        a("v_mov_b32 %s, 0" % vr(EACC + i))
    a("v_cmp_eq_u32 s[38:39], 0, v2")
    a.wait(vm_tags=[("D", 0)])
    a("s_barrier")
    stamp(a, 1, sW, 5)
    dma_chunk(2, opt=False)
    NFR = NKS * 4
    a_read(EAB, vEA, 0, ("A", 0))
    for n in range(PF):
        tr_reads(EBB + (n % NB) * 4, vTL + n % 4, vTH + n % 4, n // 4, ("B", n))
    for t in range(NKS):
        a.comment("extra k-step %d" % t)
        fstamp(a, t, sW)
        ab = EAB + (t % 2) * 4
        a.wait(lg_tags=[("A", t)])
        for i in range(4):
            a("v_cndmask_b32 %s, %s, %s, s[38:39]" % (vr(ab + i), vr(ab + i), vr(EONES)))
        if t + 1 < NKS:
            a_read(EAB + ((t + 1) % 2) * 4, vEA, t + 1, ("A", t + 1))
        a("s_nop 0")
        mfma(a, EST + 4, ab, ab)
        mfma(a, EST, EONES, ab)
        for j in range(4):
            n = 4 * t + j
            m = n + PF
            a.wait(lg_tags=[("B", n)])
            mfma(a, EACC + j * 4, EBB + (n % NB) * 4, ab)
            if m < NFR:
                tr_reads(EBB + (m % NB) * 4, vTL + m % 4, vTH + m % 4, m // 4, ("B", m))
        if t < 18:
            c = t // 2
            if t % 2 == 0:
                a.wait(vm_tags=[("D", c + 1)])
                a("s_barrier")
            else:
                a("s_barrier")
                if c + 3 < NCH:
                    dma_chunk(c + 3, opt=False)
                if c == 6:
                    pack_loads(0)
    fstamp(a, 20, sW)
    a("s_nop 7")
    a("s_nop 3")
    stamp(a, 2, sW, 5)
    vES = 40
    stats_compute(EST, EST + 4, vES, 36)
    a("v_lshlrev_b32 v36, 4, v2")
    a("v_add_u32 v36, 0x%x, v36" % STAT)
    a("ds_write_b128 v36, %s" % vr(vES, 4))
    a("s_lshl_b32 %s, %s, 8" % (sr(sT0), sr(sE)))
    a("s_add_u32 %s, %s, 0x%x" % (sr(sT0), sr(sT0), CS))
    a("v_lshl_add_u32 v36, v3, 4, %s" % sr(sT0))
    a("s_mov_b64 s[36:37], exec")
    a("s_mov_b64 exec, s[38:39]")
    a("ds_write_b128 v36, %s offset:0" % vr(EACC, 4))
    a("ds_write_b128 v36, %s offset:64" % vr(EACC + 4, 4))
    a("s_cmp_eq_u32 %s, 3" % sr(sE))
    a("s_cbranch_scc1 k1_x_skipcs")
    a("ds_write_b128 v36, %s offset:128" % vr(EACC + 8, 4))
    a("ds_write_b128 v36, %s offset:192" % vr(EACC + 12, 4))
    a.label("k1_x_skipcs")
    a("s_mov_b64 exec, s[36:37]")
    a("s_waitcnt lgkmcnt(0)")
    a("s_barrier")
    a.wait(vm_tags=["P"])
    a("s_movk_i32 %s, 1639" % sr(sT2))
    a("s_lshl_b32 %s, %s, 3" % (sr(sT3), sr(sE)))
    a("v_mov_b32 v44, v36")
    for d in range(5):
        pack_rowgran(d)
        a("v_lshrrev_b32 v39, 1, v36")
        a("v_and_b32 v39, 4, v39")
        a("v_xor_b32 v38, v36, v39")
        a("v_mul_u32_u24 v38, %d, v38" % PKP)
        a("v_lshl_add_u32 v38, v37, 4, v38")
        a("v_add_u32 v38, 0x%x, v38" % PK)
        a("ds_write_b128 v38, %s" % vr(PKR + 4 * d, 4))
    a("v_mov_b32 v36, v44")
    a("s_cmp_ge_u32 %s, 2" % sr(sE))
    a("s_cbranch_scc1 k1_x_done")
    for i in range(4):
        a("ds_read_b128 %s, v36 offset:%d" % (vr(48 + 4 * i, 4), 64 * i))
    a("s_waitcnt lgkmcnt(0)")
    for i in range(4):
        if i == 1:
            a("s_cmp_eq_u32 %s, 1" % sr(sE))
            a("s_cbranch_scc1 k1_x_done")
        a("s_lshl_b32 %s, %s, 4" % (sr(sT0), sr(sE)))
        a("s_add_u32 %s, %s, %d" % (sr(sT0), sr(sT0), 4 * i))
        acc = EACC + 4 * i
        for k in range(4):
            a("v_mul_f32 v64, %s, %s" % (vr(vES + 1), vr(48 + 4 * i + k)))
            a("v_fma_f32 %s, %s, %s, -v64" % (vr(acc + k), vr(acc + k), vr(vES)))
        a("v_cvt_pk_bf16_f32 %s, %s, %s" % (vr(acc), vr(acc), vr(acc + 1)))
        a("v_cvt_pk_bf16_f32 %s, %s, %s" % (vr(acc + 1), vr(acc + 2), vr(acc + 3)))
        qkv_pos(66, sT0, 2, 64)
        a("ds_write_b64 v66, %s" % vr(acc, 2))
    a.label("k1_x_done")
    a("s_waitcnt lgkmcnt(0)")
    a("s_barrier")
    a("v_and_b32 v36, 1, v3")
    a("v_lshl_add_u32 v37, v3, 3, v30")
    a("v_lshl_add_u32 v37, v36, 2, v37")
    a("v_xor_b32 v38, 4, v37")
    a("v_mul_u32_u24 v37, %d, v37" % PKP)
    a("v_mul_u32_u24 v38, %d, v38" % PKP)
    a("v_lshl_add_u32 v37, v31, 3, v37")
    a("v_lshl_add_u32 v38, v31, 3, v38")
    a("s_mul_i32 %s, %s, 160" % (sr(sT0), sr(sE)))
    a("s_add_u32 %s, %s, 0x%x" % (sr(sT0), sr(sT0), PK))
    a("v_add_u32 v37, %s, v37" % sr(sT0))
    a("v_add_u32 v38, %s, v38" % sr(sT0))
    a("s_mul_i32 %s, s2, 20" % sr(sT1))
    a("s_mul_i32 %s, %s, 5" % (sr(sT2), sr(sE)))
    a("s_add_u32 %s, %s, %s" % (sr(sT1), sr(sT1), sr(sT2)))
    a("s_lshl_b32 %s, %s, 10" % (sr(sT1), sr(sT1)))
    a("s_add_u32 %s, %s, 0x%x" % (sr(sT0), sr(sT1), WP_OFF))
    a("v_lshl_add_u32 v39, v1, 4, %s" % sr(sT0))
    a("v_add_u32 v40, 0x1000, v39")
    a("s_cmp_ge_u32 s2, 136")
    a("s_cbranch_scc1 k1_end")
    for u in range(1):
        for cb in range(5):
            a("ds_read_b64_tr_b16 %s, v37 offset:%d" % (vr(PKR + 20 * u + 4 * cb, 2), u * 32 * PKP + 32 * cb))
            a("ds_read_b64_tr_b16 %s, v38 offset:%d" % (vr(PKR + 20 * u + 4 * cb + 2, 2), u * 32 * PKP + 32 * cb))
        a("s_mov_b32 %s, 0x%x" % (sr(sT1), u * 32 * 20 * 1024))
        a("s_waitcnt lgkmcnt(0)")
        for cb in range(4):
            a("buffer_store_dwordx4 %s, v39, %s, %s offen offset:%d" % (vr(PKR + 20 * u + 4 * cb, 4), sr(sWS, 4), sr(sT1), 1024 * cb))
        a("buffer_store_dwordx4 %s, v40, %s, %s offen" % (vr(PKR + 20 * u + 16, 4), sr(sWS, 4), sr(sT1)))
    a.label("k1_end")
    a("s_endpgm")


K2_LDS = 8 * 20480
PD = 4
NK2 = 9


def gen_k2(a):
    kn = "k2_kernel"
    a.lines.append(".globl %s" % kn)
    a.lines.append(".p2align 8")
    a.lines.append(".type %s,@function" % kn)
    a.label(kn)
    a.reset_counters()
    sX, sB2, sWS, sOUT = 8, 12, 16, 20
    sRT, sCG, sW, sT0, sT1, sT2, sBO = 50, 51, 52, 53, 54, 55, 56
    sAO = 60
    a("s_cmp_ge_u32 s2, 256")
    a("s_cbranch_scc1 k2_end")
    a("s_load_dwordx2 s[36:37], s[0:1], 0")
    a("s_load_dwordx4 s[40:43], s[0:1], 56")
    a("s_load_dwordx2 s[46:47], s[0:1], 80")
    a("s_and_b32 s3, s2, 7")
    a("s_lshr_b32 s4, s2, 3")
    a("s_lshr_b32 s5, s3, 1")
    a("s_lshl_b32 s5, s5, 3")
    a("s_and_b32 s6, s4, 7")
    a("s_add_u32 %s, s5, s6" % sr(sRT))
    a("s_and_b32 s5, s3, 1")
    a("s_lshl_b32 s5, s5, 2")
    a("s_lshr_b32 s6, s4, 3")
    a("s_add_u32 %s, s5, s6" % sr(sCG))
    a("v_lshrrev_b32 v1, 6, v0")
    a("s_nop 0")
    a("v_readfirstlane_b32 %s, v1" % sr(sW))
    a("v_and_b32 v1, 63, v0")
    a("v_and_b32 v2, 15, v1")
    a("v_lshrrev_b32 v3, 4, v1")
    a("v_lshlrev_b32 v4, 4, v1")
    a("v_add_u32 v5, 0x1000, v4")
    FB = 20
    XR = FB + PD * 36
    B2R = XR + 6
    a("s_mul_i32 %s, %s, 9" % (sr(sT0), sr(sW)))
    a("s_lshl_b32 %s, %s, 3" % (sr(sT1), sr(sW)))
    a("s_add_u32 %s, %s, 4" % (sr(sT1), sr(sT1)))
    a("s_cmp_lt_u32 %s, 4" % sr(sW))
    a("s_cselect_b32 %s, %s, %s" % (sr(sT0), sr(sT0), sr(sT1)))
    a("s_mul_i32 %s, %s, %d" % (sr(sT1), sr(sRT), 4 * RBP))
    a("s_lshl_b32 %s, %s, 10" % (sr(sT2), sr(sT0)))
    a("s_add_u32 %s, %s, %s" % (sr(sAO), sr(sT1), sr(sT2)))
    for b in range(1, 4):
        a("s_add_u32 %s, %s, %d" % (sr(sAO + b), sr(sAO), b * RBP))
    a("s_mul_i32 %s, %s, 40960" % (sr(sT1), sr(sT0)))
    a("s_mul_i32 %s, %s, 5120" % (sr(sT2), sr(sCG)))
    a("s_add_u32 %s, %s, %s" % (sr(sBO), sr(sT1), sr(sT2)))
    a("s_add_u32 %s, %s, 0x%x" % (sr(sBO), sr(sBO), WP_OFF))
    a("s_waitcnt lgkmcnt(0)")
    srd(a, sX, 36, S_TOK * D * 2)
    srd(a, sB2, 40, 640 * 2)
    srd(a, sOUT, 42, S_TOK * D * 2)
    srd(a, sWS, 46, WS_BYTES)
    global STV
    STV = 6
    stamp_init(a)
    stamp(a, 0, sW, 5)

    def loads(t):
        fb = FB + (t % PD) * 36
        for cb in range(5):
            if cb < 4:
                a("buffer_load_dwordx4 %s, v4, %s, %s offen offset:%d" % (vr(fb + 16 + 4 * cb, 4), sr(sWS, 4), sr(sBO), 1024 * cb))
            else:
                a("buffer_load_dwordx4 %s, v5, %s, %s offen" % (vr(fb + 16 + 4 * cb, 4), sr(sWS, 4), sr(sBO)))
            a.vm_issue(("F", t))
        for b in range(4):
            a("buffer_load_dwordx4 %s, v4, %s, %s offen offset:%d" % (vr(fb + 4 * b, 4), sr(sWS, 4), sr(sAO + b), 1024 * (t % 4)))
            a.vm_issue(("F", t))
        a("s_add_u32 %s, %s, 40960" % (sr(sBO), sr(sBO)))
        if t % 4 == 3:
            for b in range(4):
                a("s_add_u32 %s, %s, 4096" % (sr(sAO + b), sr(sAO + b)))

    for t in range(PD):
        loads(t)
    for t in range(NK2):
        a.comment("k2 k-step %d" % t)
        fb = FB + (t % PD) * 36
        if t == NK2 - 1:
            a("s_cmp_ge_u32 %s, 4" % sr(sW))
            a("s_cbranch_scc1 k2_skip8")
            a("s_waitcnt vmcnt(0)")
            a.vm = []
        else:
            a.wait(vm_tags=[("F", t)])
        if t == 0:
            stamp(a, 1, sW, 5)
        for cb in range(5):
            for b in range(4):
                d = (b * 5 + cb) * 4
                ar = "a[%d:%d]" % (d, d + 3)
                a("v_mfma_f32_16x16x32_bf16 %s, %s, %s, %s" % (ar, vr(fb + 16 + 4 * cb, 4), vr(fb + 4 * b, 4), ar if t else "0"))
        if t + PD < NK2 - 1:
            loads(t + PD)
        elif t + PD == NK2 - 1:
            a("s_cmp_ge_u32 %s, 4" % sr(sW))
            a("s_cbranch_scc1 k2_skipl8")
            keep = list(a.vm)
            loads(t + PD)
            a.vm = keep
            a.label("k2_skipl8")
    a.label("k2_skip8")
    stamp(a, 2, sW, 5)
    a("s_and_b32 %s, %s, 3" % (sr(sT2), sr(sW)))
    a("s_lshl_b32 %s, %s, 6" % (sr(sT0), sr(sRT)))
    a("s_lshl_b32 %s, %s, 4" % (sr(sT1), sr(sT2)))
    a("s_add_u32 %s, %s, %s" % (sr(sT0), sr(sT0), sr(sT1)))
    a("v_add_u32 v15, %s, v2" % sr(sT0))
    a("v_mul_u32_u24 v15, 1280, v15")
    a("s_mul_i32 %s, %s, 160" % (sr(sT0), sr(sCG)))
    a("s_lshr_b32 %s, %s, 2" % (sr(sT1), sr(sW)))
    a("s_mul_i32 %s, %s, 96" % (sr(sT1), sr(sT1)))
    a("s_add_u32 %s, %s, %s" % (sr(sT0), sr(sT0), sr(sT1)))
    a("v_lshl_add_u32 v16, v3, 3, %s" % sr(sT0))
    a("v_add_u32 v15, v15, v16")
    for cb in range(3):
        a("buffer_load_dwordx2 %s, v15, %s, 0 offen offset:%d" % (vr(XR + 2 * cb, 2), sr(sX, 4), 32 * cb))
        a("buffer_load_dwordx2 %s, v16, %s, 0 offen offset:%d" % (vr(B2R + 2 * cb, 2), sr(sB2, 4), 32 * cb))
    a("s_nop 7")
    a("s_mul_i32 %s, %s, 20480" % (sr(sT0), sr(sW)))
    a("v_add_u32 v18, %s, v4" % sr(sT0))
    for blk in range(20):
        a("ds_write_b128 v18, a[%d:%d] offset:%d" % (4 * blk, 4 * blk + 3, 1024 * blk))
    a("s_waitcnt lgkmcnt(0)")
    a("s_barrier")
    a("s_mul_i32 %s, %s, 5120" % (sr(sT0), sr(sT2)))
    a("s_lshr_b32 %s, %s, 2" % (sr(sT1), sr(sW)))
    a("s_mul_i32 %s, %s, 3072" % (sr(sT1), sr(sT1)))
    a("s_add_u32 %s, %s, %s" % (sr(sT0), sr(sT0), sr(sT1)))
    a("v_add_u32 v18, %s, v4" % sr(sT0))
    a("v_add_u32 v17, 0x%x, v18" % 61440)
    a("v_add_u32 v19, 0x%x, v18" % 122880)
    RD = 20
    for cb in range(3):
        if cb == 2:
            a("s_cmp_ge_u32 %s, 4" % sr(sW))
            a("s_cbranch_scc1 k2_rd2")
        for w in range(8):
            a("ds_read_b128 %s, %s offset:%d" % (vr(RD + (cb * 8 + w) * 4, 4), ("v18", "v17", "v19")[w // 3], (w % 3) * 20480 + 1024 * cb))
    a.label("k2_rd2")
    a("s_waitcnt vmcnt(0) lgkmcnt(0)")
    for cb in range(3):
        if cb == 2:
            a("s_cmp_ge_u32 %s, 4" % sr(sW))
            a("s_cbranch_scc1 k2_fin")
        r0 = RD + cb * 32
        for st in (16, 8, 4):
            for i in range(st):
                a("v_add_f32 %s, %s, %s" % (vr(r0 + i), vr(r0 + i), vr(r0 + st + i)))
        for i in range(4):
            src = XR + 2 * cb + (i >> 1)
            bsrc = B2R + 2 * cb + (i >> 1)
            if i & 1:
                a("v_and_b32 v17, 0xffff0000, %s" % vr(src))
                a("v_and_b32 v19, 0xffff0000, %s" % vr(bsrc))
            else:
                a("v_lshlrev_b32 v17, 16, %s" % vr(src))
                a("v_lshlrev_b32 v19, 16, %s" % vr(bsrc))
            a("v_add_f32 %s, %s, v19" % (vr(r0 + i), vr(r0 + i)))
            a("v_add_f32 %s, %s, v17" % (vr(r0 + i), vr(r0 + i)))
        a("v_cvt_pk_bf16_f32 %s, %s, %s" % (vr(r0), vr(r0), vr(r0 + 1)))
        a("v_cvt_pk_bf16_f32 %s, %s, %s" % (vr(r0 + 1), vr(r0 + 2), vr(r0 + 3)))
        a("buffer_store_dwordx2 %s, v15, %s, 0 offen offset:%d" % (vr(r0, 2), sr(sOUT, 4), 32 * cb))
    a.label("k2_fin")
    stamp(a, 3, sW, 5)
    a.label("k2_end")
    a("s_endpgm")


HEADER = open("cdna_kernels/%s.s.ref" % NAME).read().split("; Override launch")[0]


def desc(kn, vgpr, sgpr=80, agpr=0):
    acc = (vgpr + 3) // 4 * 4
    if agpr:
        vgpr = acc + agpr
    return """.p2align 6
.amdhsa_kernel %s
  .amdhsa_next_free_vgpr %d
  .amdhsa_next_free_sgpr %d
  .amdhsa_accum_offset %d
  .amdhsa_group_segment_fixed_size 0
  .amdhsa_kernarg_size 88
  .amdhsa_user_sgpr_count 2
  .amdhsa_user_sgpr_kernarg_segment_ptr 1
  .amdhsa_system_sgpr_workgroup_id_x 1
  .amdhsa_float_denorm_mode_32 3
.end_amdhsa_kernel
""" % (kn, vgpr, sgpr, acc)


def main():
    global STAMP
    STAMP = "--stamp" in sys.argv
    global FINE
    FINE = "--fine" in sys.argv
    a = Asm()
    gen_k1(a)
    gen_k2(a)
    out = HEADER
    out += "; @launch kernel=k1_kernel grid=(256,1,1) block=(768,1,1) lds=%d\n" % K1_LDS
    out += "; @launch kernel=k2_kernel grid=(256,1,1) block=(512,1,1) lds=%d\n" % K2_LDS
    out += '.amdgcn_target "amdgcn-amd-amdhsa--gfx950"\n.text\n'
    out += "\n".join(a.lines) + "\n"
    out += '.section .rodata,"a"\n'
    out += desc("k1_kernel", 168, 102)
    out += desc("k2_kernel", 176, 102, 80)
    path = sys.argv[1] if len(sys.argv) > 1 else "cdna_kernels/%s.s" % NAME
    open(path, "w").write(out)


main()
```
